```python
import torch

def _softmax(x, axis=-1):
    return torch.softmax(x, dim=axis)
def _gelu(x):
    return torch.nn.functional.gelu(x, approximate="tanh")
def _silu(x):
    return torch.nn.functional.silu(x)
def _sigmoid(x):
    return torch.sigmoid(x)
def _layernorm(x, axis=-1, eps=1e-5):
    m = x.mean(dim=axis, keepdim=True)
    v = x.var(dim=axis, keepdim=True, unbiased=False)
    return (x - m) / torch.sqrt(v + eps)
def _scatter_add(tgt, idx, src, axis=0):
    return tgt.clone().index_add_(axis, idx, src)
def _segment_sum(src, seg, n):
    out = torch.zeros((n,) + src.shape[1:], dtype=src.dtype)
    return out.index_add_(0, seg, src)
def _pad(x, pw):
    flat = tuple(v for pair in reversed(pw) for v in pair)
    return torch.nn.functional.pad(x, flat)

kernel_name = 'sequential_preLN__sliding_block_cached__glu_gated_bilinear__decode'

def setup_inputs():

    _w = (lambda a: (lambda t: t.to(torch.bfloat16) if t.is_floating_point() else t)(torch.as_tensor(a)))
    def _A_setup():
        B, Sq, D = 2, 1, 512
        Hq, Hkv, Sk, Dh = 32, 8, 32768, 128
        assert Hq % Hkv == 0, (Hq, Hkv)
        return {
            "x": _w((lambda *s: torch.randn(*s, dtype=torch.bfloat16) * 0.05)(B, Sq, D)),
            "k_cache": _w((lambda *s: torch.randn(*s, dtype=torch.bfloat16) * 1.6)(B, Hkv, Sk, Dh)),
            "v_cache": _w((lambda *s: torch.randn(*s, dtype=torch.bfloat16) * 0.8)(B, Hkv, Sk, Dh)),
            "wq": _w((lambda *s: torch.randn(*s, dtype=torch.bfloat16) * 1.6)(D, Hq * Dh) * (D ** -0.5)),
            "wo": _w((lambda *s: torch.randn(*s, dtype=torch.bfloat16) * 0.8)(Hq * Dh, D) * ((Hq * Dh) ** -0.5)),
        }
    _A_in = _A_setup()

    def _B_setup():
        B, S, D, F = 2, 1, 512, 1792
        return {
            "x": _w((lambda *s: torch.randn(*s, dtype=torch.bfloat16) * 0.05)(B, S, D)),
            "w_gate": _w((lambda *s: torch.randn(*s, dtype=torch.bfloat16) * 0.4)(D, F) * (D ** -0.5)),
            "w_up": _w((lambda *s: torch.randn(*s, dtype=torch.bfloat16) * 0.4)(D, F) * (D ** -0.5)),
            "w_down": _w((lambda *s: torch.randn(*s, dtype=torch.bfloat16) * 0.4)(F, D) * (F ** -0.5)),
        }
    _B_in = _B_setup()

    return {
        "A_x": _A_in["x"],
        "A_k_cache": _A_in["k_cache"],
        "A_v_cache": _A_in["v_cache"],
        "A_wq": _A_in["wq"],
        "A_wo": _A_in["wo"],
        "B_x": _B_in["x"],
        "B_w_gate": _B_in["w_gate"],
        "B_w_up": _B_in["w_up"],
        "B_w_down": _B_in["w_down"],
    }

def reference(A_x, A_k_cache, A_v_cache, A_wq, A_wo, B_x, B_w_gate, B_w_up, B_w_down):
    def _A_ref(x, k_cache, v_cache, wq, wo):
        B, Sq, D = x.shape
        Hq, Dh = 32, 128
        Hkv, Sk = k_cache.shape[1], k_cache.shape[2]
        W = min(4096, max(256, Sk // 4))
        rep = Hq // Hkv
        q = (lambda x, *d: x.permute(*d))((x @ wq).reshape(B, Sq, Hq, Dh), 0, 2, 1, 3)
        k = (lambda x, n, axis: torch.repeat_interleave(x, n, dim=axis))(k_cache[:, :, Sk - W:, :], rep, axis=1)
        v = (lambda x, n, axis: torch.repeat_interleave(x, n, dim=axis))(v_cache[:, :, Sk - W:, :], rep, axis=1)
        scores = torch.einsum("bhqd,bhkd->bhqk", q, k) * (Dh ** -0.5)
        p = _softmax(scores, axis=-1)
        o = torch.einsum("bhqk,bhkd->bhqd", p, v)
        return (lambda x, *d: x.permute(*d))(o, 0, 2, 1, 3).reshape(B, Sq, Hq * Dh) @ wo

    def _B_ref(x, w_gate, w_up, w_down):
        g = torch.einsum("bsd,df->bsf", x, w_gate)
        u = torch.einsum("bsd,df->bsf", x, w_up)
        h = g * u
        return torch.einsum("bsf,fd->bsd", h, w_down)

    x = A_x
    h = x + _A_ref(_layernorm(x, axis=-1), A_k_cache, A_v_cache, A_wq, A_wo)
    h2 = h + _B_ref(_layernorm(h, axis=-1), B_w_gate, B_w_up, B_w_down)
    return h2
```

```python
import re

TRANS = ("v_exp_f32", "v_log_f32", "v_rcp_f32", "v_rsq_f32", "v_sqrt_f32", "v_sin_f32", "v_cos_f32")

def _regs(tok):
    tok = tok.strip()
    tok = tok.lstrip("-")
    m = re.fullmatch(r"abs\((.*)\)", tok)
    if m: tok = m.group(1)
    m = re.fullmatch(r"\|(.*)\|", tok)
    if m: tok = m.group(1)
    m = re.fullmatch(r"([vsa])(\d+)", tok)
    if m: return {(m.group(1), int(m.group(2)))}
    m = re.fullmatch(r"([vsa])\[(\d+):(\d+)\]", tok)
    if m: return {(m.group(1), i) for i in range(int(m.group(2)), int(m.group(3)) + 1)}
    if tok == "vcc": return {("s", 106), ("s", 107)}
    if tok == "vcc_lo": return {("s", 106)}
    if tok == "vcc_hi": return {("s", 107)}
    if tok == "exec": return {("s", 126), ("s", 127)}
    if tok == "exec_lo": return {("s", 126)}
    if tok == "exec_hi": return {("s", 127)}
    if tok == "m0": return {("s", 124)}
    return set()

class Ins:
    def __init__(self, text):
        self.text = text
        body = text.split(";")[0].strip()
        parts = body.split(None, 1)
        self.op = parts[0]
        rest = parts[1] if len(parts) > 1 else ""
        ops = []; cur = ""; depth = 0
        for ch in rest:
            if ch in "[(": depth += 1
            if ch in "])": depth -= 1
            if ch == "," and depth == 0:
                ops.append(cur.strip()); cur = ""
            else: cur += ch
        if cur.strip(): ops.append(cur.strip())
        self.mods = ""
        if ops:
            last = ops[-1]
            m = re.match(r"(\S+\[[^\]]*\]|\S+)(.*)", last)
            ops[-1] = m.group(1); self.mods = m.group(2)
        self.ops = ops
        op = self.op
        self.is_valu = op.startswith("v_") and not op.startswith("v_mfma")
        self.is_mfma = op.startswith("v_mfma")
        self.is_salu = op.startswith("s_")
        self.is_ds = op.startswith("ds_")
        self.is_vmem = op.startswith("buffer_") or op.startswith("global_")
        self.is_dpp = loop_has_dpp(body)
        self.is_trans = op.replace("_e32", "").replace("_e64", "") in TRANS
        self.is_lds_dma = self.is_vmem and (re.search(r"\blds\b", self.mods) is not None or "load_lds" in op)
        R = [_regs(o) for o in ops]
        self.w = set(); self.r = set()
        allr = set().union(*R) if R else set()
        if self.is_mfma:
            self.w = R[0]; self.srcA = R[1]; self.srcB = R[2]; self.srcC = R[3]; self.r = R[1] | R[2] | R[3]
        elif self.is_valu:
            if op.startswith("v_cmpx"):
                self.w = R[0] | _regs("exec"); self.r = set().union(*R[1:])
            elif op.startswith("v_permlane") and "swap" in op:
                self.w = R[0] | R[1]; self.r = R[0] | R[1]
            elif op.startswith("v_nop"):
                pass
            else:
                self.w = R[0]; self.r = set().union(*R[1:]) if len(R) > 1 else set()
                if op.startswith(("v_fmac", "v_dot2c", "v_writelane", "v_pk_fmac")) or self.is_dpp or "sdwa" in op:
                    self.r |= R[0]
                if op.startswith("v_cndmask") and len(R) == 3:
                    self.r |= _regs("vcc")
                if op.startswith(("v_add_co", "v_sub_co", "v_addc_co", "v_subb_co")):
                    self.w |= R[1]
        elif self.is_ds:
            if op.startswith(("ds_read", "ds_bpermute", "ds_permute", "ds_swizzle")) or "_rtn" in op:
                self.w = R[0]; self.r = set().union(*R[1:])
            else:
                self.r = allr
        elif self.is_vmem:
            if "load" in op and not self.is_lds_dma:
                self.w = R[0]; self.r = set().union(*R[1:])
            else:
                self.r = allr
                if self.is_lds_dma: self.r |= _regs("m0")
            self.wide_store_data = set()
            if "store" in op and ("x4" in op or "x3" in op):
                self.wide_store_data = R[0] if op.startswith("buffer_") else R[1]
        elif self.is_salu:
            if op.startswith(("s_cmp", "s_cbranch", "s_branch", "s_waitcnt", "s_nop", "s_barrier", "s_sleep", "s_setprio", "s_endpgm", "s_bitcmp")):
                self.r = allr
            else:
                self.w = R[0] if R else set(); self.r = set().union(*R[1:]) if len(R) > 1 else set()
                if "saveexec" in op: self.w |= _regs("exec")
    def states(self):
        if self.op == "s_nop": return int(self.ops[0], 0) + 1
        return 1

def loop_has_dpp(body):
    return bool(re.search(r"(quad_perm|row_shr|row_shl|row_ror|row_bcast|row_mirror|row_half_mirror|row_newbcast|wave_)", body))

def isv(rs): return {x for x in rs if x[0] in "va"}
def iss(rs): return {x for x in rs if x[0] == "s"}
EXEC = _regs("exec")

def need(p, c):
    n = 0
    if p.is_valu:
        wv = isv(p.w); ws = iss(p.w)
        if c.is_mfma and wv & c.r: n = max(n, 2)
        if c.is_valu and (c.is_dpp or c.op.startswith("v_permlane")) and wv & c.r: n = max(n, 2)
        if p.is_trans and (c.is_valu or c.is_mfma) and wv & c.r: n = max(n, 1)
        if c.op.startswith(("v_readlane", "v_readfirstlane")) and wv & c.r: n = max(n, 1)
        if ws:
            if c.is_valu and ws & c.r: n = max(n, 4 if c.op.startswith(("v_readlane", "v_writelane")) else 2)
            if c.is_vmem and ws & c.r: n = max(n, 5)
            if ws & EXEC:
                if c.is_mfma: n = max(n, 4)
                if c.is_valu and c.is_dpp: n = max(n, 5)
                if c.op.startswith(("v_readlane", "v_readfirstlane", "v_writelane", "v_permlane")): n = max(n, 4)
        if ("sdwa" in p.op or "op_sel" in p.mods) and c.is_valu and wv & (c.r | c.w): n = max(n, 1)
        if p.op.startswith("v_dot2") and (c.is_valu or c.is_mfma or c.is_vmem or c.is_ds) and wv & (c.r | c.w):
            if not (c.op == p.op): n = max(n, 3)
    if p.is_mfma:
        passes = 8 if "32x32" in p.op else (2 if "4x4" in p.op else 4)
        big = {2: 5, 4: 8, 8: 12}[passes]
        if c.is_mfma:
            if p.w & (c.srcA | c.srcB): n = max(n, big)
            if p.w & c.srcC:
                if p.w == c.srcC and c.op == p.op: n = max(n, 2 if passes == 2 else 0)
                else: n = max(n, {2: 4, 4: 6, 8: 10}[passes])
            elif p.w & c.w: n = max(n, big)
        elif (c.is_valu or c.is_vmem or c.is_ds):
            if p.w & (c.r | c.w): n = max(n, big)
            if c.is_valu and p.srcC & c.w: n = max(n, {2: 1, 4: 3, 8: 7}[passes])
    if p.is_salu and ("s", 124) in p.w and c.is_lds_dma: n = max(n, 1)
    if p.is_vmem and getattr(p, "wide_store_data", None) and (p.wide_store_data & c.w): n = max(n, 2)
    return n

class Asm:
    def __init__(self):
        self.lines = []
        self.uid = 0
    def __call__(self, text):
        for t in text.strip().split("\n"):
            t = t.strip()
            if t: self.lines.append(t)
    def label(self, name): self.lines.append(name + ":")
    def newlabel(self, base):
        self.uid += 1
        return f"L_{base}_{self.uid}"
    def finalize(self):
        out = []; hist = []
        inserted = 0
        for t in self.lines:
            s = t.split(";")[0].strip()
            if not s or s.startswith(".") :
                out.append(t); continue
            if s.endswith(":"):
                out.append(t); continue
            ins = Ins(t)
            dist = 0; req = 0
            for p in reversed(hist[-24:]):
                nd = need(p, ins)
                if nd - dist > req: req = nd - dist
                dist += p.states()
                if dist > 20: break
            if req > 0:
                nop = Ins(f"s_nop {req-1}")
                out.append(f"    s_nop {req-1}"); hist.append(nop); inserted += 1
            out.append("    " + t)
            hist.append(ins)
            if ins.op in ("s_branch", "s_endpgm", "s_setpc_b64"):
                hist = []
        return "\n".join(out) + "\n"
```

```python
import sys
from asmdsl import Asm
KN = "sequential_preLN__sliding_block_cached__glu_gated_bilinear__decode_kernel"

WS_E   = 0x0
WS_QB  = 0x10000
WS_O1  = 0x20000
WS_ST  = 0x60000
WS_Y   = 0x68000
WS_HB  = 0x70000
WS_PD  = 0x80000
WS_RDY = 0xC0000
WS_TS  = 0x10000000
WS_SIZE = 0x20000000
INC_LO, INC_HI = 0x7F4A7C15, 0x9E3779B9
L_K    = 0x0
L_W    = 0x14000
L_MISC = 0x24000
L_Q    = L_MISC
L_XN   = L_MISC + 0x400
L_MX   = L_MISC + 0xC00
L_LA   = L_MISC + 0xD00
L_YA   = L_MISC + 0x1000
L_FP   = 0x20000
L_CS   = L_MISC
L_STAT = 0x0
LDS_BYTES = L_MISC + 0x2000
LOG2E = 0x3FB8AA3B
SCALE = 0x3DB504F3
SPIN_MAX = 40000

def gen(path, TS=False, opts=None):
    opts = opts or {}
    a = Asm()
    hdr = open("sequential_preLN__sliding_block_cached__glu_gated_bilinear__decode.s.ref").read().split("\n")
    for l in hdr:
        if l.startswith("; @launch"): break
        a.lines.append(l)
    a(f"; @launch grid=(256,1,1) block=(1024,1,1) lds={LDS_BYTES}")
    a(f""".amdgcn_target "amdgcn-amd-amdhsa--gfx950"
.text
.globl {KN}
.p2align 8
.type {KN},@function
{KN}:""")
    VTS = "v127"
    def ts(k):
        if not TS: return
        a("s_memrealtime s[100:101]")
        a("s_waitcnt lgkmcnt(0)")
        a(f"v_writelane_b32 {VTS}, s100, {k}")
    def srd(d, lo, n):
        a(f"s_mov_b32 s{d}, s{lo}\ns_mov_b32 s{d+1}, s{lo+1}\ns_mov_b32 s{d+2}, {hex(n)}\ns_mov_b32 s{d+3}, 0x20000")
    def ws_srd(): srd(36, 26, WS_SIZE)
    def end_wave():
        if TS:
            ts(63)
            a("s_mov_b64 exec, -1")
            ws_srd()
            a("s_lshl_b32 s98, s2, 4\ns_add_u32 s98, s98, s28\ns_lshl_b32 s98, s98, 8")
            a(f"s_add_u32 s98, s98, {hex(WS_TS)}")
            a("v_lshlrev_b32 v126, 2, v0")
            a(f"buffer_store_dword {VTS}, v126, s[36:39], s98 offen")
        a("s_endpgm")
    def bf16r(dst, src, tmp=None):
        a(f"v_cvt_pk_bf16_f32 {dst}, {src}, {src}")
        a(f"v_lshlrev_b32 {dst}, 16, {dst}")
    def unpack(lo, hi, src):
        a(f"v_lshlrev_b32 {lo}, 16, {src}")
        a(f"v_and_b32 {hi}, 0xffff0000, {src}")
    def spin_guard(cnt, exit_label):
        a(f"s_add_u32 {cnt}, {cnt}, 1\ns_cmp_gt_u32 {cnt}, {SPIN_MAX}\ns_cbranch_scc1 {exit_label}")
    def maxtree_u32(dst, regs):
        regs = list(regs)
        a(f"v_max3_u32 {dst}, {regs[0]}, {regs[1]}, {regs[2]}")
        regs = regs[3:]
        while len(regs) >= 2:
            a(f"v_max3_u32 {dst}, {dst}, {regs[0]}, {regs[1]}"); regs = regs[2:]
        if regs: a(f"v_max_u32 {dst}, {dst}, {regs[0]}")
    def flags_poll():
        if opts.get("noflagpoll"): return
        srd(40, 24, 256)
        L = a.newlabel("fl"); X = a.newlabel("flx")
        a("v_lshlrev_b32 v10, 2, v0\ns_mov_b32 s52, 0\ns_mov_b32 s53, 0x01010101")
        a.label(L)
        spin_guard("s52", X)
        a("buffer_load_dword v11, v10, s[40:43], 0 offen sc1")
        a("s_waitcnt vmcnt(0)")
        a("v_writelane_b32 v11, s53, 7")
        a("v_cmp_ne_u32 vcc, s53, v11")
        a(f"s_cbranch_vccnz {L}")
        a.label(X)
    def set_flag():
        if opts.get("noflag"): return
        srd(40, 24, 256)
        a("v_mov_b32 v10, s2\nv_mov_b32 v11, 1\ns_mov_b64 exec, 1")
        a("buffer_store_byte v11, v10, s[40:43], 0 offen sc1")
        a("s_mov_b64 exec, -1")
    def wdma_voff(v0_, v1_, rowstride):
        a(f"v_lshrrev_b32 v4, 3, v0\nv_and_b32 v5, 7, v0")
        a("v_and_b32 v6, 2, v4")
        a("v_xor_b32 v5, v5, v6")
        a("v_lshlrev_b32 v5, 4, v5")
        a(f"s_mov_b32 s52, {rowstride}")
        a("v_mul_lo_u32 v4, v4, s52")
        a(f"v_add_u32 {v0_}, v4, v5")
        a("v_xor_b32 v5, 64, v5")
        a(f"v_add_u32 {v1_}, v4, v5")
    def tr_addr(dst4, base_s):
        a("v_bfe_u32 v4, v0, 2, 2")
        a("v_lshl_add_u32 v5, v2, 3, v4")
        a("v_lshlrev_b32 v5, 7, v5")
        a("v_and_b32 v6, 3, v0\nv_lshl_add_u32 v5, v6, 3, v5")
        a("v_lshrrev_b32 v4, 1, v4")
        a("v_and_b32 v6, 1, v2\nv_lshl_add_u32 v4, v6, 1, v4")
        a("v_lshl_add_u32 v5, v4, 5, v5")
        a(f"v_add_u32 {dst4[0]}, {base_s}, v5")
        for u in range(1, 4):
            a(f"v_xor_b32 {dst4[u]}, {32*u}, {dst4[0]}")

    a("s_cmp_ge_u32 s2, 256\ns_cbranch_scc1 L_exit")
    a("s_load_dwordx16 s[4:19], s[0:1], 0\ns_load_dwordx8 s[20:27], s[0:1], 64")
    a("v_lshrrev_b32 v1, 6, v0\nv_and_b32 v0, 63, v0")
    if TS:
        a(f"v_mov_b32 {VTS}, 0")
    a("v_readfirstlane_b32 s28, v1")
    a("v_lshrrev_b32 v2, 4, v0\nv_and_b32 v3, 15, v0")
    a("s_and_b32 s29, s2, 7\ns_lshr_b32 s30, s2, 3")
    ts(0)
    a("s_cmp_lt_u32 s30, 4\ns_cbranch_scc1 L_ffn")
    a("s_sub_u32 s30, s30, 4\ns_and_b32 s31, s30, 1\ns_lshr_b32 s32, s30, 1")
    a("s_lshl_b32 s35, s29, 1\ns_add_u32 s35, s35, s31")
    a("s_mul_i32 s34, s32, 224\ns_mov_b32 s33, 9")
    a("s_cmp_lt_u32 s32, 4\ns_cbranch_scc1 L_p1")
    a("s_mul_i32 s34, s32, 320\ns_sub_u32 s34, s34, 384\ns_mov_b32 s33, 6")
    a.label("L_p1")
    a("s_cmp_ge_u32 s28, s33\ns_cbranch_scc1 L_att")
    a("s_cmp_eq_u32 s28, 5\ns_cbranch_scc1 L_svc")
    a("s_cmp_gt_u32 s28, 5\ns_cbranch_scc1 L_exit")
    a("s_cmp_lg_u32 s28, 0\ns_cbranch_scc1 L_gather")
    a("s_cmp_ge_u32 s30, 8\ns_cbranch_scc1 L_exit")

    a("s_setprio 3")
    wdma_voff("v8", "v9", 8192)
    a("v_lshlrev_b32 v7, 5, v0")
    a("s_waitcnt lgkmcnt(0)")
    a("s_load_dwordx2 s[56:57], s[26:27], 0")
    srd(40, 4, 2048); srd(44, 10, 512*8192)
    a("buffer_load_dwordx4 v[12:15], v7, s[40:43], 0 offen")
    a("buffer_load_dwordx4 v[16:19], v7, s[40:43], 0 offen offset:16")
    a("s_lshl_b32 s52, s29, 10\ns_lshl_b32 s53, s30, 7\ns_add_u32 s52, s52, s53")
    a(f"s_mov_b32 s53, {L_W}")
    def qdma(n):
        a(f"s_mov_b32 m0, s53\ns_add_u32 s53, s53, 1024")
        a(f"buffer_load_dwordx4 {'v8' if n % 2 == 0 else 'v9'}, s[44:47], s52 offen nt lds")
        a("s_add_u32 s52, s52, 0x10000")
    for n in range(60): qdma(n)
    a("s_waitcnt vmcnt(59)")
    for n in range(60, 64): qdma(n)
    ts(1)
    for k in range(8):
        unpack(f"v{20+2*k}", f"v{21+2*k}", f"v{12+k}")
    def red32(v, t):
        for r in (1, 2, 4, 8):
            a(f"v_add_f32_dpp {v}, {v}, {v} row_ror:{r} row_mask:0xf bank_mask:0xf")
        a(f"v_mov_b32 {t}, {v}")
        a(f"v_permlane16_swap_b32 {v}, {t}")
        a(f"v_add_f32 {v}, {v}, {t}")
    a("v_add_f32 v36, v20, v21")
    for k in range(22, 36): a(f"v_add_f32 v36, v36, v{k}")
    red32("v36", "v37")
    a("v_mul_f32 v36, 0x3b000000, v36")
    a("v_sub_f32 v38, v20, v36\nv_mul_f32 v39, v38, v38")
    for k in range(21, 36):
        a(f"v_sub_f32 v38, v{k}, v36\nv_fmac_f32 v39, v38, v38")
    red32("v39", "v37")
    a("v_mul_f32 v39, 0x3b000000, v39")
    bf16r("v36", "v36"); bf16r("v39", "v39")
    a("v_add_f32 v39, 0x3727c5ac, v39"); bf16r("v39", "v39")
    a("v_sqrt_f32 v39, v39"); bf16r("v39", "v39")
    a("v_rcp_f32 v39, v39")
    for k in range(8):
        a(f"v_sub_f32 v{20+2*k}, v{20+2*k}, v36\nv_sub_f32 v{21+2*k}, v{21+2*k}, v36")
        a(f"v_cvt_pk_bf16_f32 v38, v{20+2*k}, v{21+2*k}")
        unpack(f"v{20+2*k}", f"v{21+2*k}", "v38")
        a(f"v_mul_f32 v{20+2*k}, v{20+2*k}, v39\nv_mul_f32 v{21+2*k}, v{21+2*k}, v39")
        a(f"v_cvt_pk_bf16_f32 v{12+k}, v{20+2*k}, v{21+2*k}")
    a(f"v_add_u32 v7, {L_XN}, v7")
    a("ds_write_b128 v7, v[12:15]\nds_write_b128 v7, v[16:19] offset:16")
    a("v_and_b32 v4, 1, v0\nv_lshlrev_b32 v4, 10, v4\nv_lshl_add_u32 v4, v2, 4, v4")
    a(f"v_add_u32 v10, {L_XN}, v4")
    a(f"s_mov_b32 s54, {L_W}")
    tr_addr(["v40", "v41", "v42", "v43"], "s54")
    for r in range(16): a(f"v_mov_b32 v{44+r}, 0")
    a("s_waitcnt lgkmcnt(0)")
    for j in range(16):
        bufA = 60 + 4 * (j & 1)
        bufB = 68 + 16 * (j & 1)
        a(f"s_waitcnt vmcnt({60 - 4*j})")
        a(f"ds_read_b128 v[{bufA}:{bufA+3}], v10 offset:{64*j}")
        for u in range(4):
            for hf in range(2):
                d = bufB + 4*u + 2*hf
                a(f"ds_read_b64_tr_b16 v[{d}:{d+1}], v{40+u} offset:{4096*j + 512*hf}")
        if j > 0:
            pA = 60 + 4 * ((j-1) & 1); pB = 68 + 16 * ((j-1) & 1)
            a("s_waitcnt lgkmcnt(9)")
            for u in range(4):
                a(f"v_mfma_f32_16x16x32_bf16 v[{44+4*u}:{47+4*u}], v[{pA}:{pA+3}], v[{pB+4*u}:{pB+4*u+3}], v[{44+4*u}:{47+4*u}]")
    a("s_waitcnt lgkmcnt(0)")
    pA = 64; pB = 84
    for u in range(4):
        a(f"v_mfma_f32_16x16x32_bf16 v[{44+4*u}:{47+4*u}], v[{pA}:{pA+3}], v[{pB+4*u}:{pB+4*u+3}], v[{44+4*u}:{47+4*u}]")
    a(f"s_add_u32 s56, s56, {hex(INC_LO)}\ns_addc_u32 s57, s57, {hex(INC_HI)}")
    ws_srd()
    a("s_mov_b32 s58, 0xffff0000\ns_mov_b32 s59, 0\ns_mov_b32 s60, 0\ns_mov_b32 s61, 0xffff\ns_mov_b32 s62, 0\ns_mov_b32 s63, 0xffff0000")
    for b in range(2):
        a(f"v_cndmask_b32 v{20+b}, v{44+b}, v{48+b}, s[58:59]")
        a(f"v_cndmask_b32 v{20+b}, v{20+b}, v{52+b}, s[60:61]")
        a(f"v_cndmask_b32 v{20+b}, v{20+b}, v{56+b}, s[62:63]")
    a("s_lshl_b32 s52, s29, 12\ns_lshl_b32 s53, s30, 8\ns_add_u32 s52, s52, s53")
    a(f"s_add_u32 s52, s52, {hex(WS_QB)}")
    a("v_lshlrev_b32 v7, 2, v0")
    for b in range(2):
        o = 24 + 4*b
        a(f"v_mov_b32_dpp v22, v{20+b} quad_perm:[1,1,3,3] row_mask:0xf bank_mask:0xf")
        a(f"v_cvt_pk_bf16_f32 v{o}, v{20+b}, v22")
        a(f"v_mov_b32_dpp v{o+1}, v{o} quad_perm:[2,2,2,2] row_mask:0xf bank_mask:0xf")
        a(f"v_mov_b32 v{o+2}, s56\nv_mov_b32 v{o+3}, s57")
    a("s_mov_b32 exec_lo, 0x11111111\ns_mov_b32 exec_hi, 0x11111111")
    a("buffer_store_dwordx4 v[24:27], v7, s[36:39], s52 offen sc1")
    a("buffer_store_dwordx4 v[28:31], v7, s[36:39], s52 offen offset:2048 sc1")
    a("s_mov_b64 exec, -1")
    a(f"s_lshl_b32 s52, s29, 13\ns_lshl_b32 s53, s30, 3\ns_add_u32 s52, s52, s53\ns_add_u32 s52, s52, {hex(WS_RDY)}")
    a("v_lshlrev_b32 v7, 7, v0")
    a("buffer_store_dwordx2 v[26:27], v7, s[36:39], s52 offen sc1")
    ts(2)
    end_wave()

    a.label("L_att")
    a("s_sub_u32 s52, s28, s33")
    a("s_lshl_b32 s53, s31, 3\ns_add_u32 s53, s53, s29\ns_lshl_b32 s53, s53, 23")
    a("s_lshl_b32 s54, s52, 5\ns_add_u32 s54, s54, s34\ns_add_u32 s54, s54, 28672\ns_lshl_b32 s54, s54, 8")
    a("s_add_u32 s53, s53, s54")
    a("s_add_u32 s54, s53, 4096")
    a("s_lshl_b32 s55, s52, 13")
    a("v_lshlrev_b32 v4, 2, v2\nv_xor_b32 v4, v4, v3\nv_lshlrev_b32 v4, 4, v4\nv_lshl_add_u32 v4, v2, 8, v4")
    a("v_xor_b32 v5, 16, v4\nv_xor_b32 v6, 32, v4\nv_xor_b32 v7, 48, v4")
    a("v_lshlrev_b32 v8, 4, v0")
    a("s_mov_b32 m0, s55")
    a("s_waitcnt lgkmcnt(0)")
    srd(40, 6, 0x8000000); srd(44, 8, 0x8000000)
    for t in range(8):
        if t == 4: a("s_add_u32 m0, s55, 4096")
        a(f"buffer_load_dwordx4 v{4+(t&3)}, s[40:43], {'s53' if t < 4 else 's54'} offen offset:{1024*(t&3)} nt lds")
    VV = 32
    for t in range(8):
        a(f"buffer_load_dwordx4 v[{VV+4*t}:{VV+4*t+3}], v8, s[44:47], {'s53' if t < 4 else 's54'} offen offset:{1024*(t&3)} nt")
    ts(1)
    a("v_and_b32 v10, 3, v0\nv_lshrrev_b32 v11, 2, v3")
    a("v_lshl_add_u32 v12, v10, 2, v11\nv_lshlrev_b32 v12, 8, v12")
    a("v_xor_b32 v13, v2, v10\nv_lshl_add_u32 v13, v11, 2, v13\nv_lshl_add_u32 v12, v13, 4, v12")
    a("v_add_u32 v4, s55, v12")
    a("v_xor_b32 v5, 64, v4\nv_xor_b32 v6, 0x80, v4\nv_xor_b32 v7, 0xc0, v4")
    a("v_lshlrev_b32 v9, 8, v10\nv_lshl_add_u32 v9, v2, 4, v9")
    a(f"v_add_u32 v9, {L_Q}, v9")
    a(f"v_lshlrev_b32 v14, 6, v10\nv_add_u32 v14, {L_MX}, v14")
    a("s_lshl_b32 s68, s52, 2\nv_add_u32 v13, s68, v14")
    a("v_add_u32 v15, s55, v8")
    a("s_mov_b32 s56, 0x000f000f\ns_mov_b32 s57, 0x000f000f")
    a("s_lshl_b64 s[58:59], s[56:57], 4\ns_lshl_b64 s[60:61], s[56:57], 8\ns_lshl_b64 s[62:63], s[56:57], 12")
    a(f"s_mov_b32 s64, {hex(SCALE)}\ns_mov_b32 s65, {hex(LOG2E)}\ns_mov_b32 s66, 0x05040100\ns_mov_b32 s67, 0x07060302")
    a("s_barrier")
    ts(2)
    VQ = 16
    for jj in range(4):
        a(f"ds_read_b128 v[{VQ+4*jj}:{VQ+4*jj+3}], v9 offset:{64*jj}")
    a("s_waitcnt vmcnt(8)")
    VK = 64
    for T in range(2):
        for jj in range(4):
            d = VK + 16*T + 4*jj
            a(f"ds_read_b128 v[{d}:{d+3}], v{4+jj} offset:{4096*T}")
    VS = 96
    for T in range(2):
        for jj in range(4):
            d = VK + 16*T + 4*jj
            a(f"s_waitcnt lgkmcnt({7 - (4*T+jj)})")
            c = "0" if jj == 0 else f"v[{VS+4*T}:{VS+4*T+3}]"
            a(f"v_mfma_f32_16x16x32_bf16 v[{VS+4*T}:{VS+4*T+3}], v[{d}:{d+3}], v[{VQ+4*jj}:{VQ+4*jj+3}], {c}")
    for k in range(4):
        lo, hi = f"v{VS+2*k}", f"v{VS+2*k+1}"
        a(f"v_cvt_pk_bf16_f32 v10, {lo}, {hi}")
        unpack(lo, hi, "v10")
        a(f"v_mul_f32 {lo}, s64, {lo}\nv_mul_f32 {hi}, s64, {hi}")
        a(f"v_cvt_pk_bf16_f32 v10, {lo}, {hi}")
        unpack(lo, hi, "v10")
    a(f"v_max3_f32 v10, v{VS}, v{VS+1}, v{VS+2}\nv_max3_f32 v10, v10, v{VS+3}, v{VS+4}\nv_max3_f32 v10, v10, v{VS+5}, v{VS+6}\nv_max_f32 v10, v10, v{VS+7}")
    for sw in ("v_permlane16_swap_b32", "v_permlane32_swap_b32"):
        a(f"v_mov_b32 v11, v10\n{sw} v10, v11\nv_max_f32 v10, v10, v11")
    a("s_mov_b64 exec, 15\nds_write_b32 v13, v10\ns_mov_b64 exec, -1")
    a("s_waitcnt lgkmcnt(0)")
    ts(3)
    a("s_barrier")
    a("ds_read_b128 v[16:19], v14\nds_read_b128 v[20:23], v14 offset:16\nds_read_b64 v[24:25], v14 offset:32\ns_waitcnt lgkmcnt(0)")
    a("v_max3_f32 v10, v16, v17, v18\nv_max3_f32 v11, v19, v20, v21\nv_max3_f32 v10, v10, v22, v23\nv_max3_f32 v11, v11, v24, v25\nv_max_f32 v10, v10, v11")
    a("v_mul_f32 v10, s65, v10")
    for k in range(8):
        a(f"v_fma_f32 v{VS+k}, v{VS+k}, s65, -v10")
    for k in range(8):
        a(f"v_exp_f32 v{VS+k}, v{VS+k}")
    a(f"v_add_f32 v11, v{VS}, v{VS+1}")
    for k in range(2, 8): a(f"v_add_f32 v11, v11, v{VS+k}")
    for sw in ("v_permlane16_swap_b32", "v_permlane32_swap_b32"):
        a(f"v_mov_b32 v12, v11\n{sw} v11, v12\nv_add_f32 v11, v11, v12")
    a(f"s_mov_b64 exec, 15\nds_write_b32 v13, v11 offset:{L_LA-L_MX}\ns_mov_b64 exec, -1")
    for k in range(4):
        a(f"v_cvt_pk_bf16_f32 v{104+k}, v{VS+2*k}, v{VS+2*k+1}")
    VA = 16
    for u in range(4):
        for k in range(4):
            a(f"v_cndmask_b32 v{VA+4*u+k}, 0, v{104+k}, s[{56+2*u}:{57+2*u}]")
    VB = 64
    for m in range(4):
        a(f"s_waitcnt vmcnt({6-2*m})")
        for d in range(4):
            s1 = f"v{VV+4*(2*m)+d}"; s0 = f"v{VV+4*(2*m+1)+d}"
            a(f"v_perm_b32 v{VB+4*(2*d)+m}, {s0}, {s1}, s66")
            a(f"v_perm_b32 v{VB+4*(2*d+1)+m}, {s0}, {s1}, s67")
    ts(4)
    VO = 96
    for e in range(8):
        aa, u = e >> 2, e & 3
        c = "0" if u == 0 else f"v[{VO+4*aa}:{VO+4*aa+3}]"
        a(f"v_mfma_f32_16x16x32_bf16 v[{VO+4*aa}:{VO+4*aa+3}], v[{VB+4*e}:{VB+4*e+3}], v[{VA+4*u}:{VA+4*u+3}], {c}")
    for aa in range(2):
        a(f"ds_write_b128 v15, v[{VO+4*aa}:{VO+4*aa+3}] offset:{aa*1024}")
    a("s_waitcnt lgkmcnt(0)")
    a("s_barrier")
    end_wave()

    a.label("L_svc")
    a("s_setprio 2")
    a("v_mov_b32 v12, -1\nv_mov_b32 v13, -1\nv_mov_b32 v14, -1\nv_mov_b32 v15, -1")
    a("v_lshlrev_b32 v8, 4, v0")
    a(f"s_lshl_b32 s54, s35, 4\ns_add_u32 s54, s54, s32\ns_lshl_b32 s54, s54, 10\ns_add_u32 s54, s54, {hex(WS_O1)}")
    a(f"s_lshl_b32 s55, s35, 8\ns_lshl_b32 s56, s32, 2\ns_add_u32 s55, s55, s56\ns_add_u32 s55, s55, {hex(WS_ST)}")
    a("v_lshlrev_b32 v9, 6, v2")
    a("s_waitcnt lgkmcnt(0)")
    a("s_load_dwordx2 s[60:61], s[26:27], 0")
    ws_srd()
    if not opts.get("noclear_o"): a("buffer_store_dwordx4 v[12:15], v8, s[36:39], s54 offen sc1")
    a("s_mov_b32 s62, 0x00010001\ns_mov_b32 s63, 0x00010001")
    a("s_mov_b64 exec, s[62:63]")
    if not opts.get("noclear_st"): a("buffer_store_dword v12, v9, s[36:39], s55 offen sc1")
    a("s_mov_b64 exec, -1")
    def y_addr(vdst, sdst):
        a("s_sub_u32 s57, s30, 8\ns_and_b32 s58, s57, 7\ns_lshr_b32 s57, s57, 3")
        a(f"s_lshl_b32 {sdst}, s58, 12\ns_lshl_b32 s59, s57, 10\ns_add_u32 {sdst}, {sdst}, s59")
        a(f"s_lshl_b32 s59, s29, 5\ns_add_u32 {sdst}, {sdst}, s59\ns_add_u32 {sdst}, {sdst}, {hex(WS_Y)}")
        a(f"v_bfe_u32 v4, v0, 3, 1\nv_lshlrev_b32 {vdst}, 11, v4")
        a(f"v_bfe_u32 v4, v0, 1, 2\nv_lshl_add_u32 {vdst}, v4, 8, {vdst}")
        a(f"v_and_b32 v4, 1, v0\nv_lshl_add_u32 {vdst}, v4, 4, {vdst}")
    a("s_cmp_lt_u32 s30, 8\ns_cbranch_scc1 L_svc1\ns_cmp_ge_u32 s30, 24\ns_cbranch_scc1 L_svc1")
    y_addr("v16", "s64")
    a("s_mov_b64 exec, 0xffff")
    if not opts.get("noclear_y"): a("buffer_store_dwordx4 v[12:15], v16, s[36:39], s64 offen sc1")
    a("s_mov_b64 exec, -1")
    a.label("L_svc1")
    a("v_mov_b32 v20, 0\nv_mov_b32 v24, 0xff800000")
    a(f"v_lshlrev_b32 v17, 2, v0\nv_add_u32 v17, {L_MX}, v17")
    a(f"ds_write_b32 v17, v24\nds_write_b32 v17, v20 offset:{L_LA-L_MX}")
    a("s_waitcnt vmcnt(0)")
    set_flag()
    ts(1)
    a("s_cmp_lt_u32 s30, 8\ns_cbranch_scc1 L_svc2")
    a(f"s_sleep {opts.get('flag_sleep', 40)}")
    flags_poll()
    a.label("L_svc2")
    ts(2)
    a("v_and_b32 v4, 3, v0\nv_lshlrev_b32 v18, 8, v4\nv_lshl_add_u32 v18, v2, 6, v18\nv_and_b32 v5, 12, v0\nv_lshl_add_u32 v18, v5, 2, v18")
    a(f"v_lshlrev_b32 v9, 6, v4\nv_add_u32 v19, {L_MX}, v9")
    a(f"s_mov_b32 s65, {hex(LOG2E)}")
    a("v_add_u32 v16, 0x10000, v8")
    a("s_waitcnt lgkmcnt(0)")
    a("s_barrier\ns_barrier")
    a("ds_read_b128 v[20:23], v19\nds_read_b128 v[24:27], v19 offset:16\nds_read_b64 v[28:29], v19 offset:32\ns_waitcnt lgkmcnt(0)")
    a("v_max3_f32 v10, v20, v21, v22\nv_max3_f32 v11, v23, v24, v25\nv_max3_f32 v10, v10, v26, v27\nv_max3_f32 v11, v11, v28, v29\nv_max_f32 v10, v10, v11")
    a("v_mul_f32 v10, s65, v10")
    a("s_barrier")
    ts(3)
    o = L_LA - L_MX
    a(f"ds_read_b128 v[20:23], v19 offset:{o}\nds_read_b128 v[24:27], v19 offset:{o+16}\nds_read_b64 v[28:29], v19 offset:{o+32}")
    PO = 32
    def rdp(u):
        base, off = ("v8", u*8192) if u < 8 else ("v16", (u-8)*8192)
        a(f"ds_read_b128 v[{PO+8*u}:{PO+8*u+3}], {base} offset:{off}\nds_read_b128 v[{PO+8*u+4}:{PO+8*u+7}], {base} offset:{off+1024}")
    def addp(u):
        for k in range(4): a(f"v_pk_add_f32 v[{PO+2*k}:{PO+2*k+1}], v[{PO+2*k}:{PO+2*k+1}], v[{PO+8*u+2*k}:{PO+8*u+2*k+1}]")
    for u in range(6): rdp(u)
    a("s_waitcnt lgkmcnt(12)")
    a("v_add_f32 v11, v20, v21\nv_add_f32 v30, v22, v23\nv_add_f32 v11, v11, v24\nv_add_f32 v30, v30, v25\nv_add_f32 v11, v11, v26\nv_add_f32 v30, v30, v27\nv_add_f32 v11, v11, v28\nv_add_f32 v30, v30, v29\nv_add_f32 v11, v11, v30")
    rdp(6)
    a("v_rcp_f32 v30, v11\nv_log_f32 v31, v11")
    a("s_cmp_lt_u32 s30, 8\ns_cbranch_scc1 L_svc7")
    a("s_waitcnt lgkmcnt(10)"); addp(1); rdp(7)
    a("s_waitcnt lgkmcnt(10)"); addp(2); rdp(8)
    a("s_waitcnt lgkmcnt(10)"); addp(3); rdp(9)
    for u in range(4, 10):
        a(f"s_waitcnt lgkmcnt({2*(9-u)})"); addp(u)
    a("s_branch L_svc8")
    a.label("L_svc7")
    for u in range(1, 7):
        a(f"s_waitcnt lgkmcnt({2*(6-u)})"); addp(u)
    a.label("L_svc8")
    for k in range(8): a(f"v_mul_f32 v{PO+k}, v{PO+k}, v30")
    for k in range(4):
        a(f"v_cvt_pk_bf16_f32 v{12+k}, v{PO+2*k}, v{PO+2*k+1}")
        a(f"v_min_u32 v{12+k}, -2, v{12+k}")
    a("buffer_store_dwordx4 v[12:15], v18, s[36:39], s54 offen sc1")
    a("v_add_f32 v31, v31, v10\nv_min_u32 v31, -2, v31")
    a("s_mov_b64 exec, 15")
    a("buffer_store_dword v31, v9, s[36:39], s55 offen sc1")
    a("s_mov_b64 exec, -1")
    ts(4)
    a("s_cmp_ge_u32 s30, 24\ns_cbranch_scc1 L_red")
    end_wave()
    a.label("L_red")
    a("s_sub_u32 s52, s30, 24\ns_lshl_b32 s52, s52, 3\ns_add_u32 s52, s52, s29")
    a(f"s_lshl_b32 s53, s52, 7\ns_add_u32 s53, s53, {hex(WS_PD)}")
    a("v_lshrrev_b32 v4, 3, v0\nv_and_b32 v5, 7, v0")
    a("v_lshlrev_b32 v6, 12, v4\nv_lshl_add_u32 v6, v5, 4, v6")
    a("s_and_b32 s54, s52, 7\ns_lshl_b32 s54, s54, 3\nv_add_u32 v7, s54, v5")
    a("v_and_b32 v8, 15, v7\nv_lshlrev_b32 v8, 3, v8\nv_bfe_u32 v11, v7, 4, 1\nv_lshl_add_u32 v8, v11, 2, v8")
    a("v_lshrrev_b32 v7, 5, v7\nv_lshl_add_u32 v7, v7, 9, v8")
    a("v_and_b32 v8, 3, v4\nv_add_u32 v7, v7, v8")
    a("s_lshr_b32 s54, s52, 3\ns_lshl_b32 s54, s54, 7\nv_add_u32 v7, s54, v7")
    a("v_lshlrev_b32 v9, 1, v7")
    a("v_and_b32 v10, -4, v9")
    a(f"s_mov_b32 s55, {hex(WS_HB)}\ns_mov_b32 s56, 0")
    for n in range(7): a(f"s_add_u32 s{64+n}, s53, {n*32768}")
    RL = a.newlabel("rl"); RX = a.newlabel("rx")
    a.label(RL)
    spin_guard("s56", RX)
    for n in range(7):
        a(f"buffer_load_dwordx4 v[{16+4*n}:{19+4*n}], v6, s[36:39], s{64+n} offen sc1")
    a("buffer_load_dword v44, v10, s[36:39], s55 offen sc1")
    a("s_waitcnt vmcnt(0)")
    maxtree_u32("v45", [f"v{k}" for k in range(16, 45)])
    a("v_cmpx_eq_u32 vcc, -1, v45")
    a(f"s_cbranch_execnz {RL}")
    a.label(RX)
    a("s_mov_b64 exec, -1")
    ts(5)
    for n in range(1, 7):
        for r in range(4): a(f"v_add_f32 v{16+r}, v{16+r}, v{16+4*n+r}")
    for r in range(4): a(f"v_add_f32_dpp v{16+r}, v{16+r}, v{16+r} row_ror:8 row_mask:0xf bank_mask:0xf")
    for sw in ("v_permlane16_swap_b32", "v_permlane32_swap_b32"):
        for r in range(4): a(f"v_mov_b32 v{20+r}, v{16+r}")
        for r in range(4): a(f"{sw} v{16+r}, v{20+r}")
        for r in range(4): a(f"v_add_f32 v{16+r}, v{16+r}, v{20+r}")
    a("s_mov_b64 s[58:59], 0xff00\ns_mov_b64 s[62:63], 0xff0000\ns_mov_b32 s66, 0xff000000\ns_mov_b32 s67, 0")
    a("v_cndmask_b32 v16, v16, v17, s[58:59]\nv_cndmask_b32 v16, v16, v18, s[62:63]\nv_cndmask_b32 v16, v16, v19, s[66:67]")
    bf16r("v16", "v16")
    a("v_and_b32 v8, 2, v9\nv_cmp_ne_u32 vcc, 0, v8")
    unpack("v20", "v21", "v44")
    a("v_cndmask_b32 v20, v20, v21, vcc")
    a("v_add_f32 v16, v16, v20\nv_cvt_pk_bf16_f32 v16, v16, v16")
    srd(40, 22, 2048)
    a("s_mov_b32 exec_lo, -1\ns_mov_b32 exec_hi, 0")
    a("buffer_store_short v16, v9, s[40:43], 0 offen")
    a("s_cmp_lg_u32 s52, 0\ns_cbranch_scc1 L_red_end")
    a(f"s_add_u32 s60, s60, {hex(INC_LO)}\ns_addc_u32 s61, s61, {hex(INC_HI)}")
    a("v_mov_b32 v12, s60\nv_mov_b32 v13, s61\nv_mov_b32 v14, 0\ns_mov_b64 exec, 1")
    a("buffer_store_dwordx2 v[12:13], v14, s[36:39], 0 offen")
    a.label("L_red_end")
    end_wave()

    a.label("L_gather")
    a("s_setprio 1")
    a("s_sub_u32 s33, s28, 1")
    a(f"s_lshl_b32 s34, s35, 11\ns_lshl_b32 s3, s33, 9\ns_add_u32 s34, s34, s3\ns_add_u32 s34, s34, {hex(WS_QB)}")
    a("s_waitcnt lgkmcnt(0)")
    a("s_load_dwordx2 s[4:5], s[26:27], 0")
    a("s_add_u32 s6, s26, s34\ns_addc_u32 s7, s27, 0")
    a("s_waitcnt lgkmcnt(0)")
    a(f"s_add_u32 s4, s4, {hex(INC_LO)}\ns_addc_u32 s5, s5, {hex(INC_HI)}")
    a(f"s_lshl_b32 s8, s29, 13\ns_mul_i32 s9, s33, 144\ns_add_u32 s8, s8, s9\ns_add_u32 s8, s8, {hex(WS_RDY)}")
    a("s_add_u32 s10, s8, 0x2000")
    a(f"s_sleep {opts.get('q_sleep', 60)}")
    a("s_mov_b32 s3, 0")
    a.label("L_rdy")
    a("s_load_dwordx4 s[36:39], s[26:27], s8")
    a("s_add_u32 s8, s8, 512")
    a("s_waitcnt lgkmcnt(0)")
    a("s_cmp_eq_u64 s[36:37], s[4:5]\ns_cselect_b32 s9, 1, 0\ns_cmp_eq_u64 s[38:39], s[4:5]\ns_cselect_b32 s9, s9, 0")
    a("s_cmp_eq_u32 s9, 1\ns_cbranch_scc1 L_rdyx")
    a(f"s_sleep {opts.get('q_retry', 6)}")
    a("s_cmp_lt_u32 s8, s10\ns_cbranch_scc1 L_rdy")
    a.label("L_rdyx")
    ts(5)
    for un in range(2):
        C = a.newlabel("gq"); X = a.newlabel("gqx"); R = a.newlabel("gqr")
        for k in range(4):
            a(f"s_load_dwordx16 s[{36+16*k}:{51+16*k}], s[6:7], {256*un + 64*k}")
        a(f"s_branch {C}")
        a.label(R)
        a(f"s_sleep 16")
        spin_guard("s3", X)
        for k in range(4):
            a(f"s_load_dwordx16 s[{36+16*k}:{51+16*k}], s[6:7], {256*un + 64*k} glc")
        a.label(C)
        a("s_waitcnt lgkmcnt(0)")
        for n in range(16):
            a(f"s_cmp_eq_u64 s[{38+4*n}:{39+4*n}], s[4:5]\ns_cbranch_scc0 {R}")
        a.label(X)
        for n in range(16):
            a(f"v_writelane_b32 v10, s{36+4*n}, {32*un + 2*n}")
            a(f"v_writelane_b32 v10, s{37+4*n}, {32*un + 2*n + 1}")
    a(f"s_lshl_b32 s3, s33, 8\ns_add_u32 s3, s3, {L_Q}")
    a("v_lshl_add_u32 v11, v0, 2, s3")
    a("ds_write_b32 v11, v10")
    ts(1)
    a("s_waitcnt lgkmcnt(0)")
    a("s_cmp_lt_u32 s30, 8\ns_cbranch_scc1 L_gend\ns_cmp_ge_u32 s30, 24\ns_cbranch_scc1 L_gend")
    a("v_lshrrev_b32 v4, 3, v0\nv_and_b32 v5, 7, v0\nv_lshlrev_b32 v5, 4, v5\nv_lshl_add_u32 v8, v4, 10, v5")
    a("v_xor_b32 v9, 32, v8\nv_xor_b32 v10, 64, v8\nv_xor_b32 v11, 0x60, v8")
    ws_srd(); srd(44, 12, 4096*1024)
    y_addr("v16", "s64")
    a("s_lshl_b32 s52, s29, 19\ns_lshl_b32 s53, s57, 18\ns_add_u32 s52, s52, s53\ns_lshl_b32 s53, s33, 16\ns_add_u32 s52, s52, s53")
    a("s_lshl_b32 s53, s58, 7\ns_add_u32 s52, s52, s53")
    a(f"s_lshl_b32 s54, s33, 13\ns_add_u32 s54, s54, {L_W}\ns_mov_b32 s53, s54")
    a("s_barrier")
    for n in range(8):
        a(f"s_mov_b32 m0, s53\ns_add_u32 s53, s53, 1024")
        a(f"buffer_load_dwordx4 v{8+(n&3)}, s[44:47], s52 offen nt lds")
        a("s_add_u32 s52, s52, 0x2000")
    a("v_bfe_u32 v4, v0, 2, 2\nv_lshl_add_u32 v5, v4, 3, v2\nv_lshlrev_b32 v5, 7, v5\nv_lshl_add_u32 v5, v4, 5, v5")
    a("v_and_b32 v6, 3, v0\nv_lshl_add_u32 v5, v6, 3, v5\nv_add_u32 v12, s54, v5")
    for u in range(1, 4): a(f"v_xor_b32 v{12+u}, {32*u}, v12")
    a("v_min_u32 v4, 13, v3\nv_lshlrev_b32 v17, 10, v4\nv_lshl_add_u32 v17, v2, 4, v17")
    a(f"s_lshl_b32 s66, s29, 15\ns_lshl_b32 s53, s57, 9\ns_add_u32 s66, s66, s53\ns_lshl_b32 s53, s33, 7\ns_add_u32 s66, s66, s53\ns_add_u32 s66, s66, {hex(WS_O1)}")
    a("s_add_u32 s67, s66, 0x4000")
    a("v_lshlrev_b32 v18, 4, v2")
    a(f"s_lshl_b32 s68, s29, 9\ns_lshl_b32 s53, s57, 7\ns_add_u32 s68, s68, s53\ns_lshr_b32 s53, s33, 1\ns_lshl_b32 s53, s53, 6\ns_add_u32 s68, s68, s53\ns_add_u32 s68, s68, {hex(WS_ST)}")
    a("s_mov_b32 s70, 0\ns_mov_b32 s71, 0xffff0000")
    a("v_mov_b32 v19, 0xff800000")
    a(f"s_lshl_b32 s53, s33, 9\ns_add_u32 s53, s53, {L_YA}\nv_lshl_add_u32 v20, v0, 2, s53")
    a(f"v_lshlrev_b32 v21, 3, v0\nv_add_u32 v21, {L_YA}, v21")
    a("v_bfe_u32 v4, v0, 4, 1\nv_lshlrev_b32 v16, 11, v4\nv_bfe_u32 v4, v0, 2, 2\nv_lshl_add_u32 v16, v4, 8, v16")
    a("v_lshrrev_b32 v4, 5, v0\nv_lshl_add_u32 v16, v4, 4, v16\nv_and_b32 v4, 3, v0\nv_lshl_add_u32 v16, v4, 2, v16")
    a("s_mov_b32 s3, 0")
    a("s_barrier\ns_barrier")
    ts(2)
    WA = 24
    WB = 48
    WC = 80
    def h1_loads():
        for b in range(2):
            for j2 in range(2):
                d = WA + 8*b + 4*j2
                a(f"buffer_load_dwordx4 v[{d}:{d+3}], v17, s[36:39], s{66+b} offen offset:{64*j2} sc1")
        for b in range(2):
            a(f"buffer_load_dwordx4 v[{40+4*b}:{43+4*b}], v18, s[36:39], s68 offen offset:{256*b} sc1")
    h1_loads()
    a("s_waitcnt vmcnt(6)")
    for j2 in range(2):
        for u in range(4):
            for hf in range(2):
                d = WB + 16*j2 + 4*u + 2*hf
                a(f"ds_read_b64_tr_b16 v[{d}:{d+1}], v{12+u} offset:{4096*j2 + 512*hf}")
    HL = a.newlabel("h1"); HC = a.newlabel("h1c"); HX = a.newlabel("h1x")
    a(f"s_branch {HC}")
    a.label(HL)
    spin_guard("s3", HX)
    h1_loads()
    a.label(HC)
    a("s_waitcnt vmcnt(0)")
    for b in range(2):
        for r in (2, 3):
            a(f"v_cndmask_b32 v{40+4*b+r}, v{40+4*b+r}, v19, s[70:71]")
    maxtree_u32("v22", [f"v{k}" for k in range(24, 48)])
    a("v_cmpx_eq_u32 vcc, -1, v22")
    a(f"s_cbranch_execnz {HL}")
    a.label(HX)
    a("s_mov_b64 exec, -1")
    ts(3)
    a("s_waitcnt lgkmcnt(0)")
    a("s_nop 3")
    for b in range(2):
        for u in range(4):
            for j2 in range(2):
                d = WC + 16*b + 4*u
                c = "0" if j2 == 0 else f"v[{d}:{d+3}]"
                a(f"v_mfma_f32_16x16x32_bf16 v[{d}:{d+3}], v[{WA+8*b+4*j2}:{WA+8*b+4*j2+3}], v[{WB+16*j2+4*u}:{WB+16*j2+4*u+3}], {c}")
    for b in range(2):
        l0 = 40 + 4*b; m = f"v{112+2*b}"; t = f"v{113+2*b}"
        a(f"v_max3_f32 {m}, v{l0}, v{l0+1}, v{l0+2}\nv_max_f32 {m}, {m}, v{l0+3}")
        for sw in ("v_permlane16_swap_b32", "v_permlane32_swap_b32"):
            a(f"v_mov_b32 {t}, {m}\n{sw} {m}, {t}\nv_max_f32 {m}, {m}, {t}")
        for r in range(4): a(f"v_sub_f32 v{l0+r}, v{l0+r}, {m}")
        for r in range(4): a(f"v_exp_f32 v{l0+r}, v{l0+r}")
        a(f"v_add_f32 {m}, v{l0}, v{l0+1}\nv_add_f32 {t}, v{l0+2}, v{l0+3}\nv_add_f32 {m}, {m}, {t}")
        for sw in ("v_permlane16_swap_b32", "v_permlane32_swap_b32"):
            a(f"v_mov_b32 {t}, {m}\n{sw} {m}, {t}\nv_add_f32 {m}, {m}, {t}")
        a(f"v_rcp_f32 {m}, {m}")
    for b in range(2):
        l0 = 40 + 4*b
        for u in range(4):
            d = WC + 16*b + 4*u
            a(f"v_mul_f32 v{d}, v{d}, v{l0}")
            for r in range(1, 4): a(f"v_fmac_f32 v{d}, v{d+r}, v{l0+r}")
        z = [f"v{WC+16*b+4*u}" for u in range(4)]
        a(f"v_permlane16_swap_b32 {z[0]}, {z[1]}\nv_permlane16_swap_b32 {z[2]}, {z[3]}")
        a(f"v_add_f32 {z[0]}, {z[0]}, {z[1]}\nv_add_f32 {z[2]}, {z[2]}, {z[3]}")
        a(f"v_permlane32_swap_b32 {z[0]}, {z[2]}\nv_add_f32 {z[0]}, {z[0]}, {z[2]}")
        a(f"v_mul_f32 {z[0]}, {z[0]}, v{112+2*b}")
        a(f"ds_write_b32 v20, {z[0]} offset:{256*b}")
    a("s_waitcnt lgkmcnt(0)")
    a("s_barrier")
    a("s_cmp_lg_u32 s28, 1\ns_cbranch_scc1 L_gend2")
    for k in range(4): a(f"ds_read_b64 v[{24+2*k}:{25+2*k}], v21 offset:{512*k}")
    a("s_waitcnt lgkmcnt(2)\nv_pk_add_f32 v[24:25], v[24:25], v[26:27]\ns_waitcnt lgkmcnt(0)\nv_pk_add_f32 v[28:29], v[28:29], v[30:31]")
    a("v_pk_add_f32 v[24:25], v[24:25], v[28:29]")
    a("v_cvt_pk_bf16_f32 v24, v24, v25\nv_min_u32 v24, -2, v24")
    a("buffer_store_dword v24, v16, s[36:39], s64 offen sc1")
    ts(4)
    a.label("L_gend2")
    end_wave()
    a.label("L_gend")
    a("s_barrier")
    end_wave()

    a.label("L_ffn")
    a("s_cmp_ge_u32 s2, 28\ns_cbranch_scc1 L_exit")
    wdma_voff("v8", "v9", 3584)
    a("v_lshlrev_b32 v10, 4, v0")
    a("v_and_b32 v4, 1, v0\nv_lshlrev_b32 v11, 10, v4\nv_lshl_add_u32 v11, v2, 4, v11")
    a("s_lshl_b32 s60, s28, 6")
    a("s_waitcnt lgkmcnt(0)")
    ws_srd()
    a("s_cmp_lg_u32 s28, 0\ns_cbranch_scc1 L_f1")
    a("v_mov_b32 v12, -1\nv_mov_b32 v13, -1\nv_mov_b32 v14, -1\nv_mov_b32 v15, -1")
    a(f"s_lshl_b32 s52, s2, 13\ns_add_u32 s52, s52, {hex(WS_PD)}\ns_add_u32 s53, s52, 4096")
    for k in range(8):
        a(f"buffer_store_dwordx4 v[12:15], v10, s[36:39], {'s52' if k < 4 else 's53'} offen offset:{1024*(k&3)} sc1")
    a("s_cmp_lg_u32 s2, 0\ns_cbranch_scc1 L_f0")
    a(f"s_mov_b32 s52, {hex(WS_HB)}")
    for k in range(2):
        a(f"buffer_store_dwordx4 v[12:15], v10, s[36:39], s52 offen offset:{1024*k} sc1")
    a.label("L_f0")
    a("s_waitcnt vmcnt(0)")
    set_flag()
    a("v_lshlrev_b32 v10, 4, v0")
    a("v_and_b32 v4, 1, v0\nv_lshlrev_b32 v11, 10, v4\nv_lshl_add_u32 v11, v2, 4, v11")
    a.label("L_f1")
    srd(40, 4, 2048); srd(44, 16, 512*3584); srd(48, 18, 512*3584)
    a("buffer_load_dwordx4 v[16:19], v11, s[40:43], s60 offen")
    a("s_mul_i32 s52, s28, 32*3584\ns_lshl_b32 s53, s2, 7\ns_add_u32 s52, s52, s53")
    a("s_lshl_b32 s54, s28, 12\ns_mov_b32 s53, s54")
    for n in range(4):
        v = 'v8' if n % 2 == 0 else 'v9'
        a("s_mov_b32 m0, s53\ns_nop 0")
        a(f"buffer_load_dwordx4 {v}, s[44:47], s52 offen nt lds")
        a("s_add_u32 m0, s53, 0x10000\ns_add_u32 s53, s53, 1024")
        a(f"buffer_load_dwordx4 {v}, s[48:51], s52 offen nt lds")
        a(f"s_add_u32 s52, s52, {8*3584}")
    DV = 64
    a("s_cmp_lt_u32 s28, 8\ns_cbranch_scc1 L_f2")
    srd(40, 20, 1792*1024)
    a("s_sub_u32 s61, s28, 8\ns_and_b32 s62, s61, 3\ns_lshr_b32 s61, s61, 2")
    a("s_lshl_b32 s52, s2, 16\ns_lshl_b32 s53, s61, 15\ns_add_u32 s52, s52, s53\ns_lshl_b32 s53, s62, 8\ns_add_u32 s52, s52, s53\ns_add_u32 s53, s52, 4096")
    a("v_lshlrev_b32 v4, 13, v2\nv_lshl_add_u32 v4, v3, 4, v4")
    DV = 56
    for t in range(8):
        a(f"buffer_load_dwordx4 v[{DV+4*t}:{DV+4*t+3}], v4, s[40:43], {'s52' if t < 4 else 's53'} offen offset:{1024*(t&3)} nt")
    a("s_mov_b32 s66, 0x05040100\ns_mov_b32 s67, 0x07060302")
    DB = 88
    for m in range(4):
        a(f"s_waitcnt vmcnt({6-2*m})")
        for d in range(4):
            s1 = f"v{DV+4*(2*m)+d}"; s0 = f"v{DV+4*(2*m+1)+d}"
            a(f"v_perm_b32 v{DB+4*(2*d)+m}, {s0}, {s1}, s66")
            a(f"v_perm_b32 v{DB+4*(2*d+1)+m}, {s0}, {s1}, s67")
    a.label("L_f2")
    tr_addr(["v12", "v13", "v14", "v15"], "s54")
    a("s_waitcnt vmcnt(0)")
    ts(1)
    FB = 24
    for u in range(4):
        for hf in range(2):
            d = FB + 4*u + 2*hf
            a(f"ds_read_b64_tr_b16 v[{d}:{d+1}], v{12+u} offset:{512*hf}")
    for u in range(4): a(f"v_add_u32 v{12+u}, 0x10000, v{12+u}")
    for u in range(4):
        for hf in range(2):
            d = FB + 16 + 4*u + 2*hf
            a(f"ds_read_b64_tr_b16 v[{d}:{d+1}], v{12+u} offset:{512*hf}")
    a("s_mov_b32 s56, 0x000f000f\ns_mov_b32 s57, 0x000f000f")
    a("s_lshl_b64 s[58:59], s[56:57], 4\ns_lshl_b64 s[68:69], s[56:57], 8\ns_lshl_b64 s[70:71], s[56:57], 12")
    UM = ["s[56:57]", "s[58:59]", "s[68:69]", "s[70:71]"]
    for k in range(4): unpack(f"v{56+2*k}", f"v{57+2*k}", f"v{16+k}")
    a("v_mov_b32 v20, 0x3f803f80")
    FA = 64
    for u in range(4):
        for k in range(4): a(f"v_cndmask_b32 v{FA+4*u+k}, 0, v20, {UM[u]}")
    a("s_waitcnt lgkmcnt(0)")
    FC = 80
    def ffn_mfma():
        for mat in range(2):
            for u in range(4):
                d = FC + 4*mat
                c = "0" if u == 0 else f"v[{d}:{d+3}]"
                a(f"v_mfma_f32_16x16x32_bf16 v[{d}:{d+3}], v[{FA+4*u}:{FA+4*u+3}], v[{FB+16*mat+4*u}:{FB+16*mat+4*u+3}], {c}")
    ffn_mfma()
    a(f"s_lshl_b32 s53, s28, 9\ns_add_u32 s53, s53, {L_CS}\nv_lshl_add_u32 v21, v0, 3, s53")
    a(f"ds_write2_b32 v21, v{FC}, v{FC+4} offset0:0 offset1:1")
    a("s_cmp_lg_u32 s28, 0\ns_cbranch_scc1 L_f3")
    flags_poll()
    a("v_lshlrev_b32 v10, 4, v0")
    a("v_and_b32 v4, 1, v0\nv_lshlrev_b32 v11, 10, v4\nv_lshl_add_u32 v11, v2, 4, v11")
    a.label("L_f3")
    a(f"s_lshl_b32 s52, s28, 11\ns_add_u32 s52, s52, {hex(WS_Y)}\ns_mov_b32 s3, 0")
    a(f"s_lshl_b32 s53, s28, 6\nv_and_b32 v4, 1, v0\nv_lshlrev_b32 v22, 3, v4\nv_lshl_add_u32 v22, v2, 4, v22\nv_add_u32 v22, s53, v22")
    a(f"s_lshl_b32 s53, s28, 10\ns_add_u32 s53, s53, {L_FP}\nv_lshl_add_u32 v21, v0, 3, s53")
    a("s_mov_b32 s72, 0x00030003\ns_mov_b32 s73, 0x00030003")
    a("s_waitcnt lgkmcnt(0)")
    a("s_barrier")
    ts(2)
    a("s_cmp_lt_u32 s28, 8\ns_cbranch_scc1 L_f4")
    a("v_and_b32 v4, 7, v0\nv_lshl_add_u32 v4, v2, 3, v4\ns_lshl_b32 s53, s61, 5\nv_add_u32 v4, s53, v4\nv_lshlrev_b32 v4, 3, v4")
    a(f"v_add_u32 v5, {L_CS}, v4")
    a("v_mov_b32 v120, 0\nv_mov_b32 v121, 0")
    for half in range(2):
        for k in range(8): a(f"ds_read_b64 v[{64+2*k}:{65+2*k}], v5 offset:{512*(8*half+k)}")
        a("s_waitcnt lgkmcnt(0)")
        for k in range(8): a(f"v_pk_add_f32 v[120:121], v[120:121], v[{64+2*k}:{65+2*k}]")
    a(f"v_bfe_u32 v5, v0, 3, 1\nv_lshl_add_u32 v23, v5, 9, v4\nv_add_u32 v23, {L_FP}, v23")
    a("v_and_b32 v4, 7, v0\nv_lshlrev_b32 v122, 7, v4\nv_lshl_add_u32 v122, v5, 3, v122")
    a(f"s_lshl_b32 s76, s2, 1\ns_add_u32 s76, s76, s61\ns_lshl_b32 s76, s76, 2\ns_add_u32 s76, s76, s62\ns_lshl_b32 s76, s76, 10\ns_add_u32 s76, s76, {hex(WS_PD)}")
    a.label("L_f4")
    YL = a.newlabel("h2"); YX = a.newlabel("h2x")
    a.label(YL)
    spin_guard("s3", YX)
    a("buffer_load_dwordx4 v[12:15], v10, s[36:39], s52 offen sc1")
    a("buffer_load_dwordx4 v[16:19], v10, s[36:39], s52 offen offset:1024 sc1")
    a("s_waitcnt vmcnt(0)")
    maxtree_u32("v20", [f"v{k}" for k in range(12, 20)])
    a("v_cmpx_eq_u32 vcc, -1, v20")
    a(f"s_cbranch_execnz {YL}")
    a.label(YX)
    a("s_mov_b64 exec, -1")
    ts(3)
    H = 64
    for k in range(4):
        unpack(f"v{H+2*k}", f"v{H+2*k+1}", f"v{12+k}")
        unpack(f"v{H+8+2*k}", f"v{H+8+2*k+1}", f"v{16+k}")
    for k in range(8): a(f"v_add_f32 v{H+k}, v{H+k}, v{H+8+k}")
    for r in (2, 4, 8):
        for k in range(8): a(f"v_add_f32_dpp v{H+k}, v{H+k}, v{H+k} row_ror:{r} row_mask:0xf bank_mask:0xf")
    for k in range(4):
        a(f"v_cvt_pk_bf16_f32 v{12+k}, v{H+2*k}, v{H+2*k+1}")
        unpack(f"v{H+2*k}", f"v{H+2*k+1}", f"v{12+k}")
        a(f"v_add_f32 v{H+2*k}, v{H+2*k}, v{56+2*k}\nv_add_f32 v{H+2*k+1}, v{H+2*k+1}, v{57+2*k}")
        a(f"v_cvt_pk_bf16_f32 v{12+k}, v{H+2*k}, v{H+2*k+1}")
    for u in range(4):
        for k in range(4): a(f"v_cndmask_b32 v{FA+4*u+k}, 0, v{12+k}, {UM[u]}")
    ffn_mfma()
    for k in range(4): unpack(f"v{56+2*k}", f"v{57+2*k}", f"v{12+k}")
    a("v_add_f32 v16, v56, v57\nv_mul_f32 v17, v56, v56\nv_fmac_f32 v17, v57, v57")
    for k in range(58, 64): a(f"v_add_f32 v16, v16, v{k}\nv_fmac_f32 v17, v{k}, v{k}")
    a("s_mov_b64 exec, s[72:73]")
    a("ds_write_b64 v22, v[16:17]")
    a("s_cmp_lg_u32 s2, 0\ns_cbranch_scc1 L_f5")
    for k in range(4): a(f"v_min_u32 v{12+k}, -2, v{12+k}")
    a(f"s_add_u32 s53, s60, {hex(WS_HB)}")
    a("buffer_store_dwordx4 v[12:15], v11, s[36:39], s53 offen sc1")
    a.label("L_f5")
    a("s_mov_b64 exec, -1")
    a("s_nop 4")
    a(f"ds_write2_b32 v21, v{FC}, v{FC+4} offset0:0 offset1:1")
    a(f"ds_write2_b32 v21, v{FC+1}, v{FC+5} offset0:128 offset1:129")
    a("s_waitcnt lgkmcnt(0)")
    a("s_barrier")
    a("s_cmp_lt_u32 s28, 8\ns_cbranch_scc1 L_f7")
    ts(4)
    for k in range(4): a(f"ds_read2_b64 v[{56+4*k}:{59+4*k}], v122 offset0:{4*k} offset1:{4*k+2}")
    for k in range(8): a(f"ds_read2st64_b64 v[{24+4*k}:{27+4*k}], v23 offset0:{4*k} offset1:{4*k+2}")
    a("s_waitcnt lgkmcnt(8)")
    for k in range(1, 8): a(f"v_pk_add_f32 v[56:57], v[56:57], v[{56+2*k}:{57+2*k}]")
    for md in ("quad_perm:[1,0,3,2]", "quad_perm:[2,3,0,1]", "row_half_mirror"):
        a(f"v_add_f32_dpp v56, v56, v56 {md} row_mask:0xf bank_mask:0xf\nv_add_f32_dpp v57, v57, v57 {md} row_mask:0xf bank_mask:0xf")
    a("v_mul_f32 v16, 0x3b000000, v56\nv_mul_f32 v17, 0x3b000000, v57")
    a("v_fma_f32 v17, -v16, v16, v17\nv_max_f32 v17, 0, v17")
    bf16r("v16", "v16"); bf16r("v17", "v17")
    a("v_add_f32 v17, 0x3727c5ac, v17"); bf16r("v17", "v17")
    a("v_sqrt_f32 v17, v17"); bf16r("v17", "v17")
    a("v_rcp_f32 v17, v17")
    for k in range(8):
        a(f"s_waitcnt lgkmcnt({7-k})")
        if k == 0: a("v_pk_add_f32 v[24:25], v[24:25], v[26:27]")
        else:
            a(f"v_pk_add_f32 v[24:25], v[24:25], v[{24+4*k}:{25+4*k}]\nv_pk_add_f32 v[24:25], v[24:25], v[{26+4*k}:{27+4*k}]")
    a("v_fma_f32 v24, -v16, v120, v24\nv_fma_f32 v25, -v16, v121, v25")
    a("v_mul_f32 v24, v24, v17\nv_mul_f32 v25, v25, v17")
    a("v_cvt_pk_bf16_f32 v26, v24, v25")
    unpack("v24", "v25", "v26")
    a("v_mul_f32 v24, v24, v25")
    a("v_mov_b32_dpp v25, v24 quad_perm:[1,1,3,3] row_mask:0xf bank_mask:0xf")
    a("v_cvt_pk_bf16_f32 v24, v24, v25")
    for m in range(4):
        a(f"v_mov_b32_dpp v{12+m}, v24 row_newbcast:{2*m} row_mask:0xf bank_mask:0x3")
        a(f"v_mov_b32_dpp v{12+m}, v24 row_newbcast:{8+2*m} row_mask:0xf bank_mask:0xc")
    a("s_mov_b32 s72, 0x01010101\ns_mov_b32 s73, 0x01010101")
    for e in range(8):
        buf = 64 + 4*(e & 3)
        a(f"s_lshl_b64 s[74:75], s[72:73], {e}")
        for k in range(4): a(f"v_cndmask_b32 v{buf+k}, 0, v{12+k}, s[74:75]")
        c = "0" if e == 0 else "v[80:83]"
        a(f"v_mfma_f32_16x16x32_bf16 v[80:83], v[{buf}:{buf+3}], v[{DB+4*e}:{DB+4*e+3}], {c}")
    for k in range(4): a(f"v_min_u32 v{80+k}, -2, v{80+k}")
    a("buffer_store_dwordx4 v[80:83], v10, s[36:39], s76 offen sc1")
    ts(5)
    a.label("L_f7")
    end_wave()

    a.label("L_exit")
    a("s_endpgm")
    a(f""".section .rodata,"a"
.p2align 6
.amdhsa_kernel {KN}
  .amdhsa_next_free_vgpr 128
  .amdhsa_next_free_sgpr 102
  .amdhsa_accum_offset 128
  .amdhsa_group_segment_fixed_size 0
  .amdhsa_kernarg_size 96
  .amdhsa_user_sgpr_count 2
  .amdhsa_user_sgpr_kernarg_segment_ptr 1
  .amdhsa_system_sgpr_workgroup_id_x 1
  .amdhsa_float_denorm_mode_32 3
.end_amdhsa_kernel""")
    open(path, "w").write(a.finalize())

if __name__ == "__main__":
    gen("k2.s", TS=False)
    gen("k2_ts.s", TS=True)
    gen("k2a_ts.s", TS=True, opts=dict(noflagpoll=1))
    gen("k2b_ts.s", TS=True, opts=dict(noflagpoll=1, noflag=1))
    gen("k2c_ts.s", TS=True, opts=dict(noflagpoll=1, noflag=1, noclear_st=1, noclear_y=1))
    gen("k2d_ts.s", TS=True, opts=dict(noflagpoll=1, noflag=1, noclear_st=1, noclear_y=1, noclear_o=1))
```

```python
import re

TRANS = ("v_exp_f32", "v_log_f32", "v_rcp_f32", "v_rsq_f32", "v_sqrt_f32", "v_sin_f32", "v_cos_f32")

def _regs(tok):
    tok = tok.strip()
    tok = tok.lstrip("-")
    m = re.fullmatch(r"abs\((.*)\)", tok)
    if m: tok = m.group(1)
    m = re.fullmatch(r"\|(.*)\|", tok)
    if m: tok = m.group(1)
    m = re.fullmatch(r"([vsa])(\d+)", tok)
    if m: return {(m.group(1), int(m.group(2)))}
    m = re.fullmatch(r"([vsa])\[(\d+):(\d+)\]", tok)
    if m: return {(m.group(1), i) for i in range(int(m.group(2)), int(m.group(3)) + 1)}
    if tok == "vcc": return {("s", 106), ("s", 107)}
    if tok == "vcc_lo": return {("s", 106)}
    if tok == "vcc_hi": return {("s", 107)}
    if tok == "exec": return {("s", 126), ("s", 127)}
    if tok == "exec_lo": return {("s", 126)}
    if tok == "exec_hi": return {("s", 127)}
    if tok == "m0": return {("s", 124)}
    return set()

class Ins:
    def __init__(self, text):
        self.text = text
        body = text.split(";")[0].strip()
        parts = body.split(None, 1)
        self.op = parts[0]
        rest = parts[1] if len(parts) > 1 else ""
        ops = []; cur = ""; depth = 0
        for ch in rest:
            if ch in "[(": depth += 1
            if ch in "])": depth -= 1
            if ch == "," and depth == 0:
                ops.append(cur.strip()); cur = ""
            else: cur += ch
        if cur.strip(): ops.append(cur.strip())
        self.mods = ""
        if ops:
            last = ops[-1]
            m = re.match(r"(\S+\[[^\]]*\]|\S+)(.*)", last)
            ops[-1] = m.group(1); self.mods = m.group(2)
        self.ops = ops
        op = self.op
        self.is_valu = op.startswith("v_") and not op.startswith(("v_mfma", "v_smfmac"))
        self.is_mfma = op.startswith(("v_mfma", "v_smfmac"))
        self.is_salu = op.startswith("s_")
        self.is_ds = op.startswith("ds_")
        self.is_vmem = op.startswith("buffer_") or op.startswith("global_")
        self.is_dpp = loop_has_dpp(body)
        self.is_trans = op.replace("_e32", "").replace("_e64", "") in TRANS
        self.is_lds_dma = self.is_vmem and (re.search(r"\blds\b", self.mods) is not None or "load_lds" in op)
        R = [_regs(o) for o in ops]
        self.w = set(); self.r = set()
        allr = set().union(*R) if R else set()
        if op.startswith("v_smfmac"):
            self.w = R[0]; self.srcA = R[1]; self.srcB = R[2] | R[3]; self.srcC = R[0]; self.r = allr
        elif self.is_mfma:
            self.w = R[0]; self.srcA = R[1]; self.srcB = R[2]; self.srcC = R[3]; self.r = R[1] | R[2] | R[3]
        elif self.is_valu:
            if op.startswith("v_cmpx"):
                self.w = R[0] | _regs("exec"); self.r = set().union(*R[1:])
            elif op.startswith("v_permlane") and "swap" in op:
                self.w = R[0] | R[1]; self.r = R[0] | R[1]
            elif op.startswith("v_nop"):
                pass
            else:
                self.w = R[0]; self.r = set().union(*R[1:]) if len(R) > 1 else set()
                if op.startswith(("v_fmac", "v_dot2c", "v_writelane", "v_pk_fmac")) or self.is_dpp or "sdwa" in op:
                    self.r |= R[0]
                if op.startswith("v_cndmask") and len(R) == 3:
                    self.r |= _regs("vcc")
                if op.startswith(("v_add_co", "v_sub_co", "v_addc_co", "v_subb_co")):
                    self.w |= R[1]
        elif self.is_ds:
            if op.startswith(("ds_read", "ds_bpermute", "ds_permute", "ds_swizzle")) or "_rtn" in op:
                self.w = R[0]; self.r = set().union(*R[1:])
            else:
                self.r = allr
        elif self.is_vmem:
            if "load" in op and not self.is_lds_dma:
                self.w = R[0]; self.r = set().union(*R[1:])
            else:
                self.r = allr
                if self.is_lds_dma: self.r |= _regs("m0")
            self.wide_store_data = set()
            if "store" in op and ("x4" in op or "x3" in op):
                self.wide_store_data = R[0] if op.startswith("buffer_") else R[1]
        elif self.is_salu:
            if op.startswith(("s_cmp", "s_cbranch", "s_branch", "s_waitcnt", "s_nop", "s_barrier", "s_sleep", "s_setprio", "s_endpgm", "s_bitcmp")):
                self.r = allr
            else:
                self.w = R[0] if R else set(); self.r = set().union(*R[1:]) if len(R) > 1 else set()
                if "saveexec" in op: self.w |= _regs("exec")
    def states(self):
        if self.op == "s_nop": return int(self.ops[0], 0) + 1
        return 1

def loop_has_dpp(body):
    return bool(re.search(r"(quad_perm|row_shr|row_shl|row_ror|row_bcast|row_mirror|row_half_mirror|row_newbcast|wave_)", body))

def isv(rs): return {x for x in rs if x[0] in "va"}
def iss(rs): return {x for x in rs if x[0] == "s"}
EXEC = _regs("exec")

def need(p, c):
    n = 0
    if p.is_valu:
        wv = isv(p.w); ws = iss(p.w)
        if c.is_mfma and wv & c.r: n = max(n, 2)
        if c.is_valu and (c.is_dpp or c.op.startswith("v_permlane")) and wv & c.r: n = max(n, 2)
        if p.is_trans and (c.is_valu or c.is_mfma) and wv & c.r: n = max(n, 1)
        if c.op.startswith(("v_readlane", "v_readfirstlane")) and wv & c.r: n = max(n, 1)
        if ws:
            if c.is_valu and ws & c.r: n = max(n, 4 if c.op.startswith(("v_readlane", "v_writelane")) else 2)
            if c.is_vmem and ws & c.r: n = max(n, 5)
            if ws & EXEC:
                if c.is_mfma: n = max(n, 4)
                if c.is_valu and c.is_dpp: n = max(n, 5)
                if c.op.startswith(("v_readlane", "v_readfirstlane", "v_writelane", "v_permlane")): n = max(n, 4)
        if ("sdwa" in p.op or "op_sel" in p.mods) and c.is_valu and wv & (c.r | c.w): n = max(n, 1)
        if p.op.startswith("v_dot2") and (c.is_valu or c.is_mfma or c.is_vmem or c.is_ds) and wv & (c.r | c.w):
            if not (c.op == p.op): n = max(n, 3)
    if p.is_mfma:
        passes = 8 if "32x32" in p.op else (2 if "4x4" in p.op else 4)
        big = {2: 5, 4: 8, 8: 12}[passes]
        if c.is_mfma:
            if p.w & (c.srcA | c.srcB): n = max(n, big)
            if p.w & c.srcC:
                if p.w == c.srcC and c.op == p.op: n = max(n, 2 if passes == 2 else 0)
                else: n = max(n, {2: 4, 4: 6, 8: 10}[passes])
            elif p.w & c.w: n = max(n, big)
        elif (c.is_valu or c.is_vmem or c.is_ds):
            if p.w & (c.r | c.w): n = max(n, big)
            if c.is_valu and p.srcC & c.w: n = max(n, {2: 1, 4: 3, 8: 7}[passes])
    if p.is_salu and ("s", 124) in p.w and c.is_lds_dma: n = max(n, 1)
    if p.is_vmem and getattr(p, "wide_store_data", None) and (p.wide_store_data & c.w): n = max(n, 2)
    return n

class Asm:
    def __init__(self):
        self.lines = []
        self.uid = 0
    def __call__(self, text):
        for t in text.strip().split("\n"):
            t = t.strip()
            if t: self.lines.append(t)
    def label(self, name): self.lines.append(name + ":")
    def newlabel(self, base):
        self.uid += 1
        return f"L_{base}_{self.uid}"
    def finalize(self):
        out = []; hist = []
        inserted = 0
        for t in self.lines:
            s = t.split(";")[0].strip()
            if not s or s.startswith(".") :
                out.append(t); continue
            if s.endswith(":"):
                out.append(t); continue
            ins = Ins(t)
            dist = 0; req = 0
            for p in reversed(hist[-24:]):
                nd = need(p, ins)
                if nd - dist > req: req = nd - dist
                dist += p.states()
                if dist > 20: break
            if req > 0:
                nop = Ins(f"s_nop {req-1}")
                out.append(f"    s_nop {req-1}"); hist.append(nop); inserted += 1
            out.append("    " + t)
            hist.append(ins)
            if ins.op in ("s_branch", "s_endpgm", "s_setpc_b64"):
                hist = []
        return "\n".join(out) + "\n"
```

```python
import sys
from asmdsl import Asm
KN = "sequential_preLN__sliding_block_cached__glu_gated_bilinear__decode_kernel"

WS_SH  = 0x100000
WS_PD  = 0x180000
WS_CF  = 0x3000
WS_PB  = 0x8000
WS_DIE = 0x2000
WS_QP  = 0x40000
WS_QPL = 0x60000
WS_TS  = 0x10000000
WS_SIZE = 0x20000000
INC_LO, INC_HI = 0x7F4A7C15, 0x9E3779B9
L_W    = 0x14000
L_MISC = 0x24000
L_Q    = L_MISC
L_MX   = L_MISC + 0x400
L_LA   = L_MISC + 0x440
L_FL   = L_MISC + 0x500
L_WT   = L_MISC + 0x600
L_YA   = 0x20000
L_P    = L_MISC + 0x1000
L_XN   = L_MISC + 0x800
L_WQ   = 0x20000
L_FP   = 0x20000
L_CS   = L_MISC + 0x1000
L_TS   = L_MISC + 0x2000
LOG2E = 0x3FB8AA3B
SCALE = 0x3DB504F3
SPIN_MAX = 20000
SW16, SW32 = "v_permlane16_swap_b32", "v_permlane32_swap_b32"
FULL = "row_mask:0xf bank_mask:0xf"
F_Q, F_LAM, F_WO, F_CL, F_TK, F_OK, F_WS, F_WO2, F_IS, F_CS, F_O = 0, 1, 2, 3, 6, 7, 8, 9, 10, 11, 16
L_HL   = 0x22800

DEF = dict(capk=6, hand=3, handk=3, handw=8, kpre=6, fcap=2, dafter=1, dcap=8, chsub=6, lam_o=6, iod=1, ftrig=0, qlocal=6, q_stag=-1,
           wo_tok=9, wo_ntok=3, vd_tok=0, pretouch=1, pf=0, trj=0, trv=3, a_pre=0, bal=1, nprobe=4, bt=0, hp=9, hp_2=1, cha="", chf="mped", chp="agqksuvowr", fj=2, fsw=10, fcap2=3, is_n=16, rot=0, wdual=0, ydual=0, ynar=1, ysl=0, tlb=0, casc=1, rdual=9, d_is=1, pbar=0, lam_w=1, a_early=0, oc=0, wo_h=8, reld=0, pearly=1, nchb=0, capkb=0, fmap=4, nch9=3, nch10=4, wo_back=0, wo_b3=0, par=0, tiles=[4,4,4,4, 2,1,1,0,1,1,1,1, 4,4])

def gen(path, TS=False, opts=None):
    o = dict(DEF); o.update(opts or {}); opts = o
    CAPK = o["capk"]; HAND = o["hand"]; HANDK = o["handk"]; FCAP = o["fcap"]; DCAP = o["dcap"]; KPRE = o["kpre"]
    LDS_BYTES = L_MISC + (0x3000 if TS else 0x2000)
    a = Asm()
    hdr = open("sequential_preLN__sliding_block_cached__glu_gated_bilinear__decode.s.ref").read().split("\n")
    for l in hdr:
        if l.startswith("; @launch"): break
        a.lines.append(l)
    a(f"; @launch grid=(256,1,1) block=(1024,1,1) lds={LDS_BYTES}")
    a(f""".amdgcn_target "amdgcn-amd-amdhsa--gfx950"
.text
.globl {KN}
.p2align 8
.type {KN},@function
{KN}:""")
    VTS = "v127"
    def ts(k):
        if TS: a(f"s_memrealtime s[100:101]\ns_waitcnt lgkmcnt(0)\nv_writelane_b32 {VTS}, s100, {k}")
    def tl(k):
        if TS: a(f"s_memrealtime s[{86+2*k}:{87+2*k}]")
        if o.get("enc") and k == o["enc"][2]: a("s_memrealtime s[96:97]")
    def srd(d, lo, n):
        a(f"s_mov_b32 s{d}, s{lo}\ns_mov_b32 s{d+1}, s{lo+1}\ns_mov_b32 s{d+2}, {hex(n)}\ns_mov_b32 s{d+3}, 0x20000")
    def ws_srd(): srd(36, 26, WS_SIZE)
    def end_wave(final=False):
        if TS: a("s_branch L_tsdump" if final else "s_branch L_tsend")
        elif o.get("enc"): a("s_branch L_enc")
        else: a("s_endpgm")
    def bf16r(dst, src):
        a(f"v_cvt_pk_bf16_f32 {dst}, {src}, {src}\nv_lshlrev_b32 {dst}, 16, {dst}")
    def unpack(lo, hi, src):
        a(f"v_lshlrev_b32 {lo}, 16, {src}\nv_and_b32 {hi}, 0xffff0000, {src}")
    def spin_guard(cnt, exit_label, mul=1):
        a(f"s_add_u32 {cnt}, {cnt}, 1\ns_cmp_gt_u32 {cnt}, {SPIN_MAX*mul}\ns_cbranch_scc1 {exit_label}")
    def maxtree(dst, regs):
        regs = list(regs)
        a(f"v_max3_u32 {dst}, {regs[0]}, {regs[1]}, {regs[2]}")
        regs = regs[3:]
        while len(regs) >= 2:
            a(f"v_max3_u32 {dst}, {dst}, {regs[0]}, {regs[1]}"); regs = regs[2:]
        if regs: a(f"v_max_u32 {dst}, {dst}, {regs[0]}")
    def tag_from(lo):
        a(f"s_add_u32 s{lo}, s{lo}, {hex(INC_LO)}\ns_addc_u32 s{lo+1}, s{lo+1}, {hex(INC_HI)}")
    def mfma(d, A, B, c=None):
        cc = "0" if c is None else f"v[{c}:{c+3}]"
        a(f"v_mfma_f32_16x16x32_bf16 v[{d}:{d+3}], v[{A}:{A+3}], v[{B}:{B+3}], {cc}")
    def smf(d, A, B, idx):
        a(f"v_smfmac_f32_16x16x64_bf16 v[{d}:{d+3}], v[{A}:{A+3}], v[{B}:{B+7}], {idx}")
    def ror4(k): return "quad_perm:[0,1,2,3]" if k % 4 == 0 else f"row_ror:{4*(k % 4)}"
    CH = {"A": o["cha"], "F": o["chf"]}
    def nxt(key):
        if key in o["chp"]: return "L_att"
        for c, ch in CH.items():
            if key in ch:
                k = ch.index(key)
                return f"L_t_{ch[k+1]}" if k + 1 < len(ch) else f"L_tret{c}"
    def fresh(key, jump=True, al=10):
        if nxt(key):
            if jump: a(f"s_branch L_b_{key}")
            a.lines.append(".rept 288\n    s_endpgm\n.endr\n.p2align %d" % al)
            a.label(f"L_t_{key}")
            a(f"s_branch {nxt(key)}")
            a.label(f"L_b_{key}")
    def walk(c):
        if CH[c]: a(f"s_branch L_t_{CH[c][0]}")
        a.label(f"L_tret{c}")
    def wait_flag(addr_v, cnt, tmp="v4", slp=1, thr=None):
        L = a.newlabel("ls"); X = a.newlabel("lsx")
        a(f"s_mov_b32 {cnt}, 0")
        a.label(L)
        a(f"ds_read_b32 {tmp}, {addr_v}")
        spin_guard(cnt, X, 8)
        if thr: a(f"s_waitcnt lgkmcnt(0)\nv_cmp_lt_u32 vcc, {tmp}, {thr}\ns_cbranch_vccz {X}")
        else: a(f"s_waitcnt lgkmcnt(0)\nv_cmp_eq_u32 vcc, 0, {tmp}\ns_cbranch_vccz {X}")
        if slp: a(f"s_sleep {slp}")
        a(f"s_branch {L}")
        a.label(X)
    def wait4(addr_v, r, cnt, off=0, slp=0):
        L = a.newlabel("w4"); X = a.newlabel("w4x")
        a(f"s_mov_b32 {cnt}, 0")
        a.label(L)
        a(f"ds_read_b128 v[{r}:{r+3}], {addr_v} offset:{off}")
        spin_guard(cnt, X, 8)
        a(f"s_waitcnt lgkmcnt(0)\nv_max3_u32 v4, v{r}, v{r+1}, v{r+2}\nv_max_u32 v4, v4, v{r+3}\nv_cmp_eq_u32 vcc, -1, v4")
        if slp: a(f"s_cbranch_vccz {X}\ns_sleep {slp}\ns_branch {L}")
        else: a(f"s_cbranch_vccnz {L}")
        a.label(X)
        a("s_waitcnt lgkmcnt(0)")
    def regroup(r):
        a(f"v_mov_b32 v{r+1}, v{r}\n{SW16} v{r}, v{r+1}\nv_mov_b32 v{r+2}, v{r}\nv_mov_b32 v{r+3}, v{r+1}\n{SW32} v{r}, v{r+2}\n{SW32} v{r+1}, v{r+3}")
    def check_all(cnt, X, va, vd, own=False):
        L = a.newlabel("ca")
        a(f"v_mov_b32 {va}, s29" if own else f"v_bfe_u32 {va}, v0, 2, 3")
        a(f"v_lshlrev_b32 {va}, 14, {va}\nv_and_b32 v{vd}, 3, v0\nv_lshl_add_u32 {va}, v{vd}, 8, {va}\nv_add_u32 {va}, {hex(WS_QP)}, {va}")
        a(f"s_mov_b32 {cnt}, 0\ns_mov_b32 s80, 0x0c0c0400\ns_mov_b32 s81, 0x05040100")
        a.label(L)
        spin_guard(cnt, X)
        a(f"buffer_load_dwordx4 v[{vd}:{vd+3}], {va}, s[36:39], 0 offen sc1\ns_waitcnt vmcnt(0)")
        a(f"v_perm_b32 v{vd}, v{vd+1}, v{vd}, s80\nv_perm_b32 v{vd+2}, v{vd+3}, v{vd+2}, s80\nv_perm_b32 v{vd}, v{vd+2}, v{vd}, s81")
        a(f"v_cmp_ne_u32 vcc, s60, v{vd}\ns_cbranch_vccz {X}\ns_sleep 2\ns_branch {L}")
    def go_word(cnt, va, vd):
        L = a.newlabel("gw"); X = a.newlabel("gwx")
        a(f"s_mov_b32 {cnt}, 0\nv_mov_b32 {va}, {hex(WS_DIE)}")
        a.label(L)
        a(f"s_sub_u32 s55, s55, s60\ns_cmp_le_u32 s55, 2\ns_cbranch_scc1 {X}")
        spin_guard(cnt, X)
        a(f"s_sleep 4\nbuffer_load_dword {vd}, {va}, s[36:39], 0 offen sc1\ns_waitcnt vmcnt(0)\nv_readfirstlane_b32 s55, {vd}\ns_branch {L}")
        a.label(X)
    def fmap4(f, wid, i):
        a(f"s_sub_u32 {f}, {wid}, 7\ns_lshr_b32 s3, s29, 1\ns_add_u32 s3, s3, 17\ns_cmp_eq_u32 {i}, 3\ns_cselect_b32 {f}, s3, {f}\ns_mul_i32 s3, {f}, 11\ns_lshr_b32 s3, s3, 5\ns_add_u32 {f}, {f}, s3")
        a(f"s_lshl_b32 s3, s29, 2\ns_sub_u32 s3, s3, 1\ns_max_i32 s3, s3, 0\ns_cmp_eq_u32 {i}, 0\ns_cselect_b32 {f}, s3, {f}")
        a(f"s_and_b32 s3, {wid}, 25\ns_add_u32 s52, {wid}, 4\ns_cmp_eq_u32 s3, 24\ns_cselect_b32 {f}, s52, {f}")
    def umasks():
        a("s_mov_b32 s56, 0x000f000f\ns_mov_b32 s57, 0x000f000f")
        a("s_lshl_b64 s[58:59], s[56:57], 4\ns_lshl_b64 s[60:61], s[56:57], 8\ns_lshl_b64 s[62:63], s[56:57], 12")
    def near_copy(dst, tmp):
        if o["iod"]:
            a(f"s_getreg_b32 {dst}, hwreg(HW_REG_XCC_ID, 2, 1)")
            a(f"{'s_xor_b32' if o['iod'] == 1 else 's_xnor_b32'} {dst}, {dst}, {tmp}\ns_and_b32 {dst}, {dst}, 1\ns_lshl_b32 {dst}, {dst}, 13")
        else: a(f"s_mov_b32 {dst}, 0")
    def row8_voff(dst, rowstride_expr):
        a(f"v_lshrrev_b32 v4, 3, v0\nv_and_b32 v5, 6, v4\nv_xor_b32 v5, v5, v0\nv_and_b32 v5, 7, v5\nv_lshlrev_b32 {dst}, 4, v5")

    a("s_cmp_ge_u32 s2, 256\ns_cbranch_scc1 L_exit0")
    a("s_load_dwordx16 s[4:19], s[0:1], 0\ns_load_dwordx8 s[20:27], s[0:1], 64")
    if TS or o.get("lite") or o.get("enc"): a("s_memrealtime s[100:101]")
    if o.get("agg"): a("s_mov_b32 s96, 0")
    a("v_lshrrev_b32 v1, 6, v0\nv_and_b32 v0, 63, v0")
    a("s_and_b32 s29, s2, 7\ns_lshr_b32 s30, s2, 3")
    a("v_readfirstlane_b32 s28, v1")
    a("v_lshrrev_b32 v2, 4, v0\nv_and_b32 v3, 15, v0")
    if TS:
        for k in range(1, 7): a(f"s_mov_b32 s{86+2*k}, 0")
    a("s_and_b32 s31, s30, 1\ns_lshr_b32 s32, s30, 1\ns_sub_u32 s32, s32, 2")
    a("s_cmp_eq_u32 s28, 4\ns_cbranch_scc1 L_q")
    a("s_cmp_lt_u32 s30, 4\ns_cbranch_scc1 L_f0")
    E = o["tiles"]; assert len(E) == 14 and sum(E) == 32 and max(E) <= 4
    T = sum(((1 << e) - 1) << (4*k) for k, e in enumerate(E))
    a(f"s_mov_b32 s64, {hex(T & 0xffffffff)}\ns_mov_b32 s65, {hex(T >> 32)}\ns_lshl_b32 s3, s32, 2\ns_bfm_b64 s[66:67], s3, 0\ns_and_b64 s[66:67], s[66:67], s[64:65]\ns_bcnt1_i32_b64 s34, s[66:67]")
    a("s_lshr_b64 s[64:65], s[64:65], s3\ns_and_b32 s64, s64, 15\ns_bcnt1_i32_b32 s69, s64\ns_lshl2_add_u32 s34, s3, s34\ns_addk_i32 s34, 1792\ns_lshl_b32 s34, s34, 12")
    ROT = o["rot"]
    if ROT: a(f"s_lshl3_add_u32 s3, s31, s29\ns_mul_i32 s35, s3, {ROT*4096}\ns_add_u32 s34, s34, s35\ns_lshl3_add_u32 s35, s3, 7\ns_lshl_b32 s35, s35, 20\ns_mov_b32 s33, 0xfffff")
    else: a("s_lshl_b32 s3, s31, 3\ns_add_u32 s3, s3, s29\ns_lshl_b32 s3, s3, 23\ns_add_u32 s34, s34, s3")
    def wrap(r):
        if ROT: a(f"s_and_b32 {r}, {r}, s33\ns_or_b32 {r}, {r}, s35")
    a("s_cmp_lt_u32 s28, 4\ns_cbranch_scc1 L_g")
    a("s_barrier")
    for k, key in enumerate(o["chp"]): a(f"s_cmp_eq_u32 s28, {6+k}\ns_cbranch_scc1 L_t_{key}")
    a("s_branch L_att")
    a.label("L_f0")
    if o["pf"]:
        a("s_cmp_lt_u32 s28, 14\ns_cbranch_scc1 L_f1")
        a(f"s_getpc_b64 s[40:41]\ns_and_b32 s40, s40, 0xffffff00\ns_mov_b32 s42, L_exit-{KN}\ns_mov_b32 s43, 0x20000\ns_and_b32 s3, s28, 1\ns_lshl_b32 s3, s3, 13\nv_lshlrev_b32 v4, 7, v0")
        a("buffer_load_dword v126, v4, s[40:43], s3 offen")
    a.label("L_f1")
    if o["fj"] == 2: a("s_cmp_ge_u32 s28, 8\ns_cbranch_scc1 L_ffn8")
    a("v_mov_b32 v12, -1\nv_mov_b32 v13, -1\nv_mov_b32 v14, -1\nv_mov_b32 v15, -1\nv_lshlrev_b32 v10, 4, v0")
    a(f"s_lshr_b32 s3, s28, 2\ns_sub_u32 s3, s28, s3\ns_lshl3_add_u32 s3, s2, s3\ns_addk_i32 s3, {WS_SH>>11}\ns_lshl_b32 s3, s3, 11")
    a(f"s_mov_b32 s38, {hex(WS_SIZE)}\ns_mov_b32 s39, 0x20000\ns_bitcmp1_b32 0xe7, s28\ns_waitcnt lgkmcnt(0)\ns_mov_b32 s36, s26\ns_mov_b32 s37, s27\ns_cbranch_scc0 L_f2")
    a("buffer_store_dwordx4 v[12:15], v10, s[36:39], s3 offen sc1\nbuffer_store_dwordx4 v[12:15], v10, s[36:39], s3 offen offset:1024 sc1")
    a.label("L_f2")
    a(f"s_cmp_ge_u32 s28, 4\ns_cbranch_scc1 L_f3\ns_lshl4_add_u32 s76, s2, s28\ns_addk_i32 s76, {WS_PD>>10}\ns_lshl_b32 s76, s76, 10\ns_add_u32 s77, s76, 0x2000")
    a("buffer_store_dwordx4 v[12:15], v10, s[36:39], s76 offen sc1\nbuffer_store_dwordx4 v[12:15], v10, s[36:39], s77 offen sc1")
    a.label("L_f3")
    a("s_branch L_ffn" if o["fj"] else "s_barrier\ns_branch L_ffn")
    a.label("L_exit0")
    a("s_endpgm")
    a.label("L_g")
    a("s_lshl_b32 s54, s28, 12\ns_add_u32 s53, s34, s54\ns_mov_b32 m0, s54"); wrap("s53")
    a("v_lshlrev_b32 v8, 2, v2\nv_xor_b32 v8, v8, v3\nv_lshlrev_b32 v8, 4, v8\nv_lshl_add_u32 v8, v2, 8, v8")
    a("v_xor_b32 v9, 16, v8\nv_xor_b32 v10, 32, v8\nv_xor_b32 v11, 48, v8")
    a("s_mov_b32 s42, 0x8000000\ns_mov_b32 s43, 0x20000\ns_movk_i32 s55, 0x4000")
    if o["capkb"]: a("s_cmp_eq_u32 s29, 0\ns_cselect_b64 vcc, 1, 0")
    a("s_cmp_lt_u32 s28, s69\ns_cselect_b32 s51, 4, 3\ns_cmp_lt_u32 s51, 0")
    a("s_waitcnt lgkmcnt(0)\ns_mov_b32 s40, s6\ns_mov_b32 s41, s7")
    for nm, cap in (("L_kl", CAPK), ("L_km", o["capkb"])):
        if not cap: continue
        if nm == "L_kl" and o["capkb"]: a("s_cbranch_vccnz L_km")
        a.label(nm)
        for t in range(4):
            a(f"s_waitcnt vmcnt({cap-1})\nbuffer_load_dwordx4 v{8+t}, s[40:43], s53 offen offset:{1024*t} nt lds")
        a(f"s_cbranch_scc1 {nm}1\ns_barrier")
        a.label(nm + "1")
        a("s_add_u32 m0, m0, s55\ns_add_u32 s53, s53, s55"); wrap("s53")
        a(f"s_add_u32 s51, s51, -1\ns_cbranch_scc1 {nm}\ns_branch L_klx")
    a.label("L_q")
    a("s_setprio 3")
    a(f"v_mov_b32 v12, -1\nv_lshlrev_b32 v17, 2, v0\nv_add_u32 v17, {L_MX}, v17\nv_mov_b32 v20, 0")
    a(f"ds_write_b32 v17, v20 offset:{L_FL-L_MX}\nds_write_b32 v17, v12")
    a("v_lshrrev_b32 v4, 3, v0\nv_and_b32 v5, 2, v4\nv_xor_b32 v5, v5, v0\nv_and_b32 v5, 7, v5\nv_lshlrev_b32 v5, 4, v5\nv_lshl_add_u32 v8, v4, 13, v5")
    a(f"v_xor_b32 v9, 64, v8\nv_add_u32 v9, {0x10000-1024}, v9\nv_add_u32 v10, {0x20000-2048}, v8\nv_add_u32 v11, {0x20000-2048}, v9")
    a("v_lshlrev_b32 v7, 5, v0")
    a("s_and_b32 s58, s30, 7\ns_lshr_b32 s57, s30, 3\ns_lshl_b32 s53, s29, 3\ns_add_u32 s58, s58, s53")
    a("s_lshl_b32 s52, s58, 7\ns_lshl_b32 s53, s57, 20\ns_add_u32 s52, s52, s53")
    a(f"s_mov_b32 m0, {L_WQ}\ns_movk_i32 s42, 2048\ns_mov_b32 s43, 0x20000\ns_mov_b32 s46, {512*8192}\ns_mov_b32 s47, s43\ns_lshl_b32 s55, s43, 1\ns_movk_i32 s54, 0x1000")
    a("s_waitcnt lgkmcnt(0)")
    a("s_mov_b32 s40, s4\ns_mov_b32 s41, s5\ns_mov_b32 s44, s10\ns_mov_b32 s45, s11")
    a("buffer_load_dwordx4 v[40:43], v7, s[40:43], 0 offen\nbuffer_load_dwordx4 v[44:47], v7, s[40:43], 0 offen offset:16")
    for j in range(4):
        if j > 0: a("s_add_u32 m0, m0, s54\ns_add_u32 s52, s52, s55")
        for t in range(4): a(f"buffer_load_dwordx4 v{8+t}, s[44:47], s52 offen offset:{1024*t} nt lds")
    a("s_load_dwordx2 s[60:61], s[26:27], 0")
    a("s_barrier")
    a.label("L_q1")
    ws_srd()
    a("v_bfe_u32 v4, v0, 2, 2\nv_lshl_add_u32 v5, v2, 3, v4\nv_lshlrev_b32 v5, 7, v5\nv_and_b32 v6, 3, v0\nv_lshl_add_u32 v5, v6, 3, v5\nv_lshrrev_b32 v4, 1, v4")
    a(f"v_and_b32 v6, 1, v2\nv_lshl_add_u32 v4, v6, 1, v4\nv_lshl_add_u32 v5, v4, 5, v5\nv_add_u32 v48, {L_WQ}, v5")
    for u in range(1, 4): a(f"v_xor_b32 v{48+u}, {32*u}, v48")
    a(f"v_add_u32 v7, {L_XN}, v7")
    a(f"s_lshl_b32 s53, s57, 8\ns_add_u32 s53, s53, {L_XN}\nv_bfe_u32 v4, v0, 2, 1\nv_lshlrev_b32 v10, 10, v4\nv_lshl_add_u32 v10, v2, 4, v10\nv_add_u32 v10, s53, v10")
    a("v_lshlrev_b32 v11, 13, v4\nv_lshl_add_u32 v11, v2, 6, v11\nv_and_b32 v4, 3, v0\nv_lshl_add_u32 v11, v4, 4, v11")
    a(f"s_lshl_b32 s55, s29, 14\ns_lshl_b32 s53, s30, 8\ns_add_u32 s55, s55, s53\ns_add_u32 s55, s55, {hex(WS_QP)}")
    PT = 1 if o["pretouch"] else 0
    a(f"s_mov_b32 s74, 0x00ff00ff\ns_mov_b32 s75, 0x00ff00ff\ns_add_u32 s76, s55, {WS_QPL-WS_QP}")
    a("s_waitcnt lgkmcnt(0)")
    if PT:
        a("v_mov_b32 v60, s60\nv_mov_b32 v61, s60\nv_mov_b32 v62, s60\nv_mov_b32 v63, s60\ns_mov_b64 exec, s[74:75]")
        a("buffer_store_dwordx4 v[60:63], v11, s[36:39], s76 offen\ns_mov_b64 exec, -1")
    a(f"s_waitcnt vmcnt({16+PT})")
    tl(6)
    tag_from(60)
    for k in range(8): unpack(f"v{20+2*k}", f"v{21+2*k}", f"v{40+k}")
    def red32(v, t):
        for r in (1, 2, 4, 8): a(f"v_add_f32_dpp {v}, {v}, {v} row_ror:{r} {FULL}")
        a(f"v_mov_b32 {t}, {v}\n{SW16} {v}, {t}\nv_add_f32 {v}, {v}, {t}")
    a("v_pk_add_f32 v[36:37], v[20:21], v[22:23]")
    for k in range(24, 36, 2): a(f"v_pk_add_f32 v[36:37], v[36:37], v[{k}:{k+1}]")
    a("v_add_f32 v36, v36, v37")
    red32("v36", "v37")
    a("v_mul_f32 v36, 0x3b000000, v36")
    a("v_sub_f32 v38, v20, v36\nv_mul_f32 v39, v38, v38")
    for k in range(21, 36): a(f"v_sub_f32 v38, v{k}, v36\nv_fmac_f32 v39, v38, v38")
    red32("v39", "v37")
    a("v_mul_f32 v39, 0x3b000000, v39")
    bf16r("v36", "v36"); bf16r("v39", "v39")
    a("v_add_f32 v39, 0x3727c5ac, v39"); bf16r("v39", "v39")
    a("v_sqrt_f32 v39, v39"); bf16r("v39", "v39")
    a("v_rcp_f32 v39, v39")
    for k in range(8):
        a(f"v_sub_f32 v{20+2*k}, v{20+2*k}, v36\nv_sub_f32 v{21+2*k}, v{21+2*k}, v36\nv_cvt_pk_bf16_f32 v38, v{20+2*k}, v{21+2*k}")
        unpack(f"v{20+2*k}", f"v{21+2*k}", "v38")
        a(f"v_mul_f32 v{20+2*k}, v{20+2*k}, v39\nv_mul_f32 v{21+2*k}, v{21+2*k}, v39\nv_cvt_pk_bf16_f32 v{40+k}, v{20+2*k}, v{21+2*k}")
    fresh("a")
    a("ds_write_b128 v7, v[40:43]\nds_write_b128 v7, v[44:47] offset:16")
    for j in range(4): a(f"ds_read_b128 v[{20+4*j}:{23+4*j}], v10 offset:{64*j}")
    QA = 96
    for j in range(4):
        B = 64 + 16*(j&1); PB = 64 + 16*((j-1)&1)
        a(f"s_waitcnt vmcnt({12-4*j+PT})")
        for u in range(4):
            for hf in range(2):
                a(f"ds_read_b64_tr_b16 v[{B+4*u+2*hf}:{B+4*u+2*hf+1}], v{48+u} offset:{4096*j + 512*hf}")
        if j > 0:
            a("s_waitcnt lgkmcnt(8)")
            for u in range(4): mfma(QA+4*u, PB+4*u, 20+4*(j-1), None if j == 1 else QA+4*u)
    a("s_waitcnt lgkmcnt(0)")
    for u in range(4): mfma(QA+4*u, 80+4*u, 32, QA+4*u)
    a("s_mov_b32 s62, 0x22222222\ns_mov_b32 s63, 0x22222222\ns_lshl_b64 s[64:65], s[62:63], 1\ns_lshl_b64 s[66:67], s[62:63], 2\ns_getreg_b32 s77, hwreg(HW_REG_XCC_ID, 0, 4)\ns_add_u32 s77, s77, 1\ns_lshl_b32 s77, s77, 24\ns_add_u32 s77, s77, s60\nv_mov_b32 v5, s77\nv_mov_b32 v9, s60")
    if o.get("force_global"): a("v_mov_b32 v5, s60")
    for r in range(4): a(f"s_mov_b32 s{68+r}, {hex(0x03020104 + r)}")
    for r in range(4): a(f"v_cndmask_b32 v{20+r}, v{QA+r}, v{QA+4+r}, s[62:63]")
    for r in range(4): a(f"v_cndmask_b32 v{20+r}, v{20+r}, v{QA+8+r}, s[64:65]")
    for r in range(4): a(f"v_cndmask_b32 v{20+r}, v{20+r}, v{QA+12+r}, s[66:67]")
    for r in range(4): a(f"v_perm_b32 v{60+r}, v5, v{20+r}, s{68+r}")
    a("s_mov_b64 exec, s[74:75]\nbuffer_store_dwordx4 v[60:63], v11, s[36:39], s76 offen")
    tl(1)
    a("s_cmp_ge_u32 s30, 4\ns_cbranch_scc1 L_svc_d")
    a(f"v_mov_b32 v6, {L_FL+4*F_CL}\nv_mov_b32 v7, 7")
    wait_flag("v6", "s3", thr="v7", slp=1)
    a("v_perm_b32 v63, v9, v63, s71\nbuffer_store_dwordx4 v[60:63], v11, s[36:39], s55 offen sc1\ns_mov_b64 exec, -1\ns_setprio 0\nv_lshlrev_b32 v10, 4, v0\ns_branch L_ffn4")
    a.label("L_svc_d")
    a("s_mov_b64 exec, -1\nv_lshlrev_b32 v8, 4, v0")
    a("s_lshl_b32 s35, s29, 1\ns_add_u32 s35, s35, s31")
    a(f"s_lshl_b32 s56, s31, 18\ns_lshl_b32 s57, s29, 14\ns_add_u32 s56, s56, s57\ns_lshl_b32 s57, s32, 2\ns_add_u32 s56, s56, s57\ns_add_u32 s56, s56, {hex(WS_SH+0x1400)}")
    a(f"s_lshl_b32 s52, s35, 13\ns_add_u32 s52, s52, {hex(WS_QPL)}\ns_add_u32 s53, s52, 4096\ns_mov_b32 s3, 0")
    a("s_bfe_u32 s65, s60, 0x80008\ns_bfe_u32 s66, s60, 0x80010\ns_and_b32 s64, s60, 0xff\ns_lshr_b32 s62, s77, 24\ns_lshr_b32 s63, s60, 24")
    a(f"v_lshlrev_b32 v10, 7, v2\nv_and_b32 v4, 3, v0\nv_lshl_add_u32 v10, v4, 5, v10\nv_bfe_u32 v4, v0, 2, 2\nv_lshl_add_u32 v10, v4, 3, v10\nv_add_u32 v10, {L_Q}, v10")
    a(f"v_mov_b32 v5, {L_FL+4*F_Q}")
    a(f"s_mov_b64 s[78:79], -1\ns_mov_b32 s54, s52\ns_mov_b32 s57, s53\ns_mov_b32 s72, s62\ns_mov_b32 s59, 1")
    def q_issue(R):
        lo, hi = ("s52", "s53") if R == RA else ("s54", "s57")
        for n in range(8):
            a(f"buffer_load_dwordx4 v[{R+4*n}:{R+4*n+3}], v8, s[36:39], {lo if n < 4 else hi} offen offset:{1024*(n&3)} sc1")
    RA, RB = 20, 64
    if o.get("noq"):
        a(f"v_mov_b32 v56, 0\nv_mov_b32 v57, 0\nds_write_b64 v10, v[56:57]\nds_write_b64 v10, v[56:57] offset:512\ns_sleep {o['noq']}\ns_branch L_qgx")
    if o.get("q_delay"): a(f"s_sleep {o['q_delay']}")
    q_issue(RA)
    if o["q_stag"] >= 0:
        if o["q_stag"]: a(f"s_sleep {o['q_stag']}")
        q_issue(RB)
    else: a(f"v_not_b32 v{RB}, s64\ns_waitcnt vmcnt(0)")
    fresh("g", al=11)
    a.label("L_qg")
    spin_guard("s3", "L_qgx")
    for R in (RA, RB):
        N = a.newlabel("qn"); G2 = a.newlabel("qgg")
        t3 = "s62" if R == RA else "s72"
        a("s_waitcnt vmcnt(8)")
        for k in range(32): a(f"v_xor_b32 v{R+k}, {t3 if (k&3) == 3 else 's%d' % (64+(k&3))}, v{R+k}")
        a(f"v_or_b32 v52, v{R}, v{R+1}\nv_or_b32 v53, v{R+2}, v{R+3}")
        for k in range(4, 32, 2): a(f"v_or3_b32 v{52+((k>>1)&1)}, v{52+((k>>1)&1)}, v{R+k}, v{R+k+1}")
        a("v_or_b32 v52, v52, v53\nv_and_b32 v52, 0xff, v52\nv_cmp_ne_u32 vcc, 0, v52")
        a(f"s_andn2_b64 exec, s[78:79], vcc\ns_mov_b64 s[78:79], vcc\ns_cbranch_execz {N}")
        if R == RB: a("s_cmp_eq_u32 s72, s62\ns_cselect_b32 s59, s59, 2")
        for hf in range(2):
            for c in range(2):
                r = R + 4*hf + 2*c
                a(f"v_pk_add_f32 v[{r}:{r+1}], v[{r}:{r+1}], v[{r+8}:{r+9}]\nv_pk_add_f32 v[{r+16}:{r+17}], v[{r+16}:{r+17}], v[{r+24}:{r+25}]")
        for hf in range(2):
            for c in range(2):
                r = R + 4*hf + 2*c
                a(f"v_pk_add_f32 v[{r}:{r+1}], v[{r}:{r+1}], v[{r+16}:{r+17}]")
        for k in range(4): a(f"v_cvt_pk_bf16_f32 v{56+k}, v{R+2*k}, v{R+2*k+1}")
        a("ds_write_b64 v10, v[56:57]\nds_write_b64 v10, v[58:59] offset:512")
        a.label(N)
        a("s_mov_b64 exec, s[78:79]\ns_cbranch_execz L_qgx")
        if R == RB:
            a(f"s_cmp_eq_u32 s3, {o['qlocal']}\ns_cbranch_scc0 {G2}")
            a("s_mov_b64 exec, s[74:75]\nv_perm_b32 v63, v9, v63, s71\nbuffer_store_dwordx4 v[60:63], v11, s[36:39], s55 offen sc1")
            a(f"s_xor_b32 s54, s54, {hex(WS_QPL ^ WS_QP)}\ns_xor_b32 s57, s57, {hex(WS_QPL ^ WS_QP)}\ns_mov_b32 s72, s63\ns_mov_b64 exec, s[78:79]")
            a.label(G2)
        q_issue(R)
    a("s_branch L_qg")
    fresh("q", jump=False)
    a.label("L_qgx")
    a("s_mov_b64 exec, -1\nv_mov_b32 v6, s59\nds_write_b32 v5, v6")
    tl(3)
    check_all("s3", "L_qok", "v7", 96, own=True)
    a.label("L_qok")
    a(f"ds_write_b32 v5, v6 offset:{4*(F_OK-F_Q)}")
    tl(2)
    a(f"v_and_b32 v4, 3, v0\nv_lshlrev_b32 v19, 4, v4\nv_add_u32 v19, {L_MX}, v19\ns_mov_b32 s65, {hex(LOG2E)}")
    wait4("v19", 24, "s3", off=L_LA-L_MX)
    a("ds_read_b128 v[20:23], v19\nv_pk_add_f32 v[24:25], v[24:25], v[26:27]\nv_add_f32 v24, v24, v25\nv_log_f32 v24, v24\ns_waitcnt lgkmcnt(0)")
    a("v_max3_f32 v10, v20, v21, v22\nv_max_f32 v10, v10, v23\nv_fma_f32 v20, v10, s65, v24")
    a("v_and_b32 v21, 1, v0\nv_lshlrev_b32 v21, 6, v21\nv_bfe_u32 v4, v0, 1, 1\nv_lshl_add_u32 v21, v4, 17, v21\ns_cmp_eq_u32 s59, 1\ns_mov_b64 exec, 15\ns_cbranch_scc0 L_svc_f")
    a("buffer_store_dword v20, v21, s[36:39], s56 offen\ns_branch L_svc_g")
    a.label("L_svc_f")
    a("buffer_store_dword v20, v21, s[36:39], s56 offen sc1")
    a.label("L_svc_g")
    a("s_mov_b64 exec, -1")
    tl(4)
    a("s_cmp_ge_u32 s30, 28\ns_cbranch_scc1 L_red")
    a("s_cmp_lt_u32 s30, 12\ns_cbranch_scc1 L_exit2")
    a(f"s_lshl_b32 s57, s31, 17\ns_lshl_b32 s68, s29, 14\ns_add_u32 s68, s68, s57\ns_add_u32 s68, s68, {hex(WS_SH+0x1400)}")
    a("v_min_u32 v4, 13, v3\nv_lshlrev_b32 v18, 2, v4\nv_and_b32 v4, 1, v2\nv_lshl_add_u32 v18, v4, 6, v18\nv_lshrrev_b32 v4, 1, v2\nv_lshl_add_u32 v18, v4, 18, v18")
    a(f"v_lshlrev_b32 v19, 2, v0\nv_add_u32 v19, {L_WT}, v19\nv_mov_b32 v6, {L_FL+4*(F_O+o['lam_o']-1)}\ns_mov_b32 s70, 0xc000c000\ns_mov_b32 s71, 0xc000c000")
    wait_flag("v6", "s3", slp=2)
    if o["lam_w"]:
        a(f"v_mov_b32 v6, {L_FL+4*F_WO}")
        wait_flag("v6", "s3", slp=1)
    a("s_mov_b32 s3, 0")
    a.label("L_wl")
    spin_guard("s3", "L_wl_x")
    a("buffer_load_dword v20, v18, s[36:39], s68 offen sc1\ns_waitcnt vmcnt(0)\nv_cmp_eq_u32 vcc, -1, v20\ns_cbranch_vccnz L_wl")
    a.label("L_wl_x")
    a(f"v_max_f32_dpp v21, v20, v20 row_ror:1 {FULL}")
    for r in (2, 4, 8): a(f"v_max_f32_dpp v21, v21, v21 row_ror:{r} {FULL}")
    a("v_sub_f32 v20, v20, v21\nv_exp_f32 v20, v20\ns_nop 0\nv_cndmask_b32 v20, v20, 0, s[70:71]")
    a(f"v_add_f32_dpp v21, v20, v20 row_ror:1 {FULL}")
    for r in (2, 4, 8): a(f"v_add_f32_dpp v21, v21, v21 row_ror:{r} {FULL}")
    a(f"v_rcp_f32 v21, v21\nv_mov_b32 v6, {L_FL+4*F_LAM}\nv_mul_f32 v20, v20, v21\nds_write_b32 v19, v20\nds_write_b32 v6, v6")
    tl(5)
    end_wave()
    a.label("L_red")
    a("s_sub_u32 s52, s30, 28")
    if o.get("skw") is not None:
        a("s_cmp_lg_u32 s52, 0\ns_cbranch_scc1 L_sk0\ns_lshl_b32 s53, s29, 7\ns_add_u32 s53, s53, 0x3000\nv_mov_b32 v4, 0\nv_mov_b32 v5, s100\ns_mov_b64 exec, 1\nbuffer_store_dword v5, v4, s[36:39], s53 offen sc1\ns_mov_b64 exec, -1")
        a.label("L_sk0")
    a(f"s_lshl_b32 s53, s52, 10\ns_lshl_b32 s54, s29, 7\ns_add_u32 s53, s53, s54\ns_add_u32 s53, s53, {hex(WS_PD)}")
    a("v_and_b32 v5, 7, v0\nv_lshrrev_b32 v4, 3, v0\nv_lshlrev_b32 v6, 14, v4\nv_lshl_add_u32 v6, v5, 4, v6")
    a("s_lshl_b32 s54, s29, 3\nv_add_u32 v7, s54, v5")
    a("v_and_b32 v8, 15, v7\nv_lshlrev_b32 v8, 3, v8\nv_lshrrev_b32 v11, 4, v7\nv_add_u32 v8, v8, v11\nv_lshrrev_b32 v11, 1, v2\nv_lshl_add_u32 v8, v11, 2, v8")
    a("s_lshl_b32 s54, s52, 7\nv_add_u32 v8, s54, v8")
    a("v_and_b32 v7, 1, v2")
    a("v_lshl_add_u32 v9, v7, 9, v8\nv_lshlrev_b32 v9, 1, v9")
    if o.get("odiag"): a("s_lshl_b32 s54, s29, 8\ns_lshl_b32 s56, s52, 6\ns_add_u32 s54, s54, s56\nv_lshlrev_b32 v9, 4, v2\nv_lshl_add_u32 v9, v5, 1, v9\nv_add_u32 v9, s54, v9")
    if o.get("odiag") == 2: a("s_mov_b64 s[74:75], 0")
    a("s_mov_b32 s56, 0")
    srd(40, 22, 2048)
    if o.get("otouch"): a("buffer_load_ushort v56, v9, s[40:43], 0 offen")
    a(f"v_mov_b32 v13, {L_FL+4*(F_O+7)}")
    wait_flag("v13", "s3", slp=4)
    a(f"s_load_dword s55, s[26:27], {hex(WS_DIE)}\ns_waitcnt lgkmcnt(0)")
    go_word("s3", "v13", "v16")
    near_copy("s54", "s55")
    a("s_add_u32 s53, s53, s54")
    for n in range(4): a(f"s_add_u32 s{64+n}, s53, {n*131072}")
    if o["fmap"] == 5: a("v_mov_b32 v10, v6\nv_cmp_lt_u32 vcc, 7, v0\nv_cndmask_b32 v6, 2.0, v6, vcc")
    elif o["fmap"] == 4: a("s_mov_b32 vcc_lo, 0xff00ffff\ns_mov_b32 vcc_hi, 0xff00ff00\nv_cndmask_b32 v10, 2.0, v6, vcc")
    else: a("v_cmp_gt_u32 vcc, 40, v0\nv_cndmask_b32 v10, 2.0, v6, vcc")
    fresh("r")
    tl(5)
    def r_issue(R):
        for n in range(4): a(f"buffer_load_dwordx4 v[{R+4*n}:{R+4*n+3}], {'v6' if n < 3 else 'v10'}, s[36:39], s{64+n} offen sc1")
    def r_sum(R, pend):
        a(f"s_waitcnt vmcnt({pend+2})\nv_pk_add_f32 v[48:49], v[{R}:{R+1}], v[{R+4}:{R+5}]\nv_pk_add_f32 v[50:51], v[{R+2}:{R+3}], v[{R+6}:{R+7}]")
        a(f"s_waitcnt vmcnt({pend})\nv_pk_add_f32 v[52:53], v[{R+8}:{R+9}], v[{R+12}:{R+13}]\nv_pk_add_f32 v[54:55], v[{R+10}:{R+11}], v[{R+14}:{R+15}]")
        a("v_pk_add_f32 v[48:49], v[48:49], v[52:53]\nv_pk_add_f32 v[50:51], v[50:51], v[54:55]\nv_pk_add_f32 v[52:53], v[48:49], v[50:51]")
    if o["rdual"]:
        r_issue(16)
        if o["rdual"] < 9: a(f"s_sleep {o['rdual']}")
        a.label("L_rl")
        spin_guard("s56", "L_rx")
        r_issue(32); r_sum(16, 4)
        a("v_cmpx_u_f32 vcc, v52, v53\ns_cbranch_execz L_rx")
        r_issue(16); r_sum(32, 4)
        a("v_cmpx_u_f32 vcc, v52, v53\ns_cbranch_execnz L_rl")
    else:
        a.label("L_rl")
        spin_guard("s56", "L_rx")
        r_issue(16); r_sum(16, 0)
        a("v_cmpx_u_f32 vcc, v52, v53\ns_cbranch_execnz L_rl")
    a.label("L_rx")
    a("s_mov_b64 exec, -1")
    tl(6)
    a(f"{SW16} v48, v49\n{SW16} v50, v51\nv_add_f32 v48, v48, v49\nv_add_f32 v50, v50, v51")
    a(f"{SW32} v48, v50\nv_add_f32 v48, v48, v50\nv_add_f32_dpp v48, v48, v48 row_ror:8 {FULL}")
    a("v_cvt_pk_bf16_f32 v48, v48, v48")
    a("s_mov_b64 exec, s[74:75]\nbuffer_store_short v48, v9, s[40:43], 0 offen" + o.get("ost", ""))
    if o.get("e_early"): a("s_branch L_red_end")
    a("s_cmp_lg_u32 s2, 224\ns_cbranch_scc1 L_red_end")
    a("v_mov_b32 v12, s60\nv_mov_b32 v13, s61\nv_mov_b32 v14, 0\ns_mov_b64 exec, 1")
    a("buffer_store_dwordx2 v[12:13], v14, s[36:39], 0 offen")
    a.label("L_red_end")
    if o.get("lite"):
        a(f"s_memrealtime s[96:97]\ns_mov_b64 exec, 1\ns_lshl_b32 s52, s2, 3\ns_add_u32 s52, s52, {hex(WS_TS)}\nv_mov_b32 v14, 0\nv_mov_b32 v12, s100\ns_waitcnt lgkmcnt(0)\nv_mov_b32 v13, s96")
        a("buffer_store_dwordx2 v[12:13], v14, s[36:39], s52 offen")
    end_wave(True)

    fresh("k", jump=False)
    a.label("L_klx")
    a(f"v_mov_b32 v4, {L_FL+4*F_TK}\nv_mov_b32 v5, 1")
    a("v_and_b32 v10, 3, v0\nv_lshrrev_b32 v11, 2, v3")
    a("v_lshl_add_u32 v12, v10, 2, v11\nv_lshlrev_b32 v12, 8, v12")
    a("v_xor_b32 v13, v2, v10\nv_lshl_add_u32 v13, v11, 2, v13\nv_lshl_add_u32 v12, v13, 4, v12")
    a(f"s_waitcnt vmcnt({HANDK})")
    a("s_mov_b64 exec, 1\nds_add_u32 v4, v5\ns_mov_b64 exec, -1")
    tl(1)
    a("s_lshl_b32 s55, s28, 12\nv_add_u32 v112, s55, v12\nv_xor_b32 v113, 64, v112\nv_xor_b32 v114, 0x80, v112\nv_xor_b32 v115, 0xc0, v112")
    for k in range(4): a(f"v_add_u32 v{116+k}, 0x10000, v{112+k}")
    a(f"v_lshlrev_b32 v9, 8, v10\nv_lshl_add_u32 v9, v2, 4, v9\nv_add_u32 v9, {L_Q}, v9")
    a(f"v_lshlrev_b32 v14, 4, v10\nv_add_u32 v14, {L_MX}, v14\ns_lshl_b32 s68, s28, 2\nv_add_u32 v13, s68, v14")
    a(f"s_lshl_b32 s68, s28, 7\ns_add_u32 s68, s68, {L_P}\nv_lshlrev_b32 v15, 9, v11\nv_lshl_add_u32 v15, v2, 5, v15\nv_lshl_add_u32 v15, v10, 3, v15\nv_add_u32 v15, s68, v15")
    umasks()
    a("s_cmp_lt_u32 s28, s69\ns_cselect_b64 s[72:73], s[56:57], 0")
    a(f"s_mov_b32 s64, {hex(SCALE)}\ns_mov_b32 s65, {hex(LOG2E)}\nv_mov_b32 v8, 0xff800000\nv_mov_b32 v11, {L_FL+4*F_Q}")
    VQ, VK = 16, 32
    a("s_waitcnt vmcnt(0)")
    for sl in range(5):
        for jj in range(4):
            d = VK + 16*sl + 4*jj
            a(f"ds_read_b128 v[{d}:{d+3}], v{(112 if sl < 4 else 116)+jj} offset:{(sl & 3)*0x4000}")
    wait_flag("v11", "s3")
    for jj in range(4): a(f"ds_read_b128 v[{VQ+4*jj}:{VQ+4*jj+3}], v9 offset:{64*jj}")
    DT = [112, 116, 120, 4, 32]
    for jj in range(4):
        a(f"s_waitcnt lgkmcnt({3-jj})")
        for sl in (0, 1, 2, 3): mfma(DT[sl], VK+16*sl+4*jj, VQ+4*jj, None if jj == 0 else DT[sl])
    for jj in range(4): mfma(DT[4], VK+64+4*jj, VQ+4*jj, None if jj == 0 else DT[4])
    X, Y = 48, 52
    for r in range(4): a(f"v_cndmask_b32 v{X+r}, v{DT[0]+r}, v{DT[1]+r}, s[58:59]")
    for r in range(4): a(f"v_cndmask_b32 v{X+r}, v{X+r}, v{DT[2]+r}, s[60:61]")
    for r in range(4): a(f"v_cndmask_b32 v{X+r}, v{X+r}, v{DT[3]+r}, s[62:63]")
    for r in range(4): a(f"v_cndmask_b32 v{Y+r}, v8, v{DT[4]+r}, s[72:73]")
    fresh("s")
    VS = X
    for k in range(4): a(f"v_cvt_pk_bf16_f32 v{56+k}, v{VS+2*k}, v{VS+2*k+1}")
    for k in range(4): unpack(f"v{VS+2*k}", f"v{VS+2*k+1}", f"v{56+k}")
    for k in range(8): a(f"v_mul_f32 v{VS+k}, s64, v{VS+k}")
    for k in range(4): a(f"v_cvt_pk_bf16_f32 v{56+k}, v{VS+2*k}, v{VS+2*k+1}")
    for k in range(4): unpack(f"v{VS+2*k}", f"v{VS+2*k+1}", f"v{56+k}")
    a(f"v_max3_f32 v10, v{VS}, v{VS+1}, v{VS+2}\nv_max3_f32 v11, v{VS+3}, v{VS+4}, v{VS+5}\nv_max3_f32 v10, v10, v{VS+6}, v{VS+7}\nv_max_f32 v10, v10, v11")
    for r in (4, 8): a(f"v_max_f32_dpp v10, v10, v10 row_ror:{r} {FULL}")
    for sw in (SW16, SW32): a(f"v_mov_b32 v11, v10\n{sw} v10, v11\nv_max_f32 v10, v10, v11")
    a("ds_write_b32 v13, v10")
    wait4("v14", 16, "s3")
    a("v_max3_f32 v10, v16, v17, v18\nv_max_f32 v10, v10, v19\nv_mul_f32 v10, s65, v10")
    for k in range(8): a(f"v_fma_f32 v{VS+k}, v{VS+k}, s65, -v10")
    for k in range(8): a(f"v_exp_f32 v{VS+k}, v{VS+k}")
    for k in range(4): a(f"v_cvt_pk_bf16_f32 v{56+k}, v{VS+2*k}, v{VS+2*k+1}")
    a("ds_write_b64 v15, v[56:57]\ns_mov_b64 exec, s[56:57]\nds_write_b64 v15, v[58:59] offset:2048\ns_mov_b64 exec, -1")
    a(f"v_pk_add_f32 v[16:17], v[{VS}:{VS+1}], v[{VS+2}:{VS+3}]\nv_pk_add_f32 v[18:19], v[{VS+4}:{VS+5}], v[{VS+6}:{VS+7}]\nv_pk_add_f32 v[16:17], v[16:17], v[18:19]\nv_add_f32 v11, v16, v17")
    for r in (4, 8): a(f"v_add_f32_dpp v11, v11, v11 row_ror:{r} {FULL}")
    for sw in (SW16, SW32): a(f"v_mov_b32 v12, v11\n{sw} v11, v12\nv_add_f32 v11, v11, v12")
    a(f"ds_write_b32 v13, v11 offset:{L_LA-L_MX}")
    a("s_waitcnt lgkmcnt(0)")
    tl(3)
    a("s_cmp_lt_u32 s30, 12\ns_cbranch_scc1 L_gend\ns_cmp_ge_u32 s30, 28\ns_cbranch_scc1 L_gend")
    fresh("o")
    a.label("L_wo")
    a("s_and_b32 s51, s28, 3\ns_lshr_b32 s50, s28, 3")
    ws_srd()
    a("s_sub_u32 s58, s32, 4\ns_mov_b32 s57, s31")
    a(f"s_lshl_b32 s54, s51, 13\ns_add_u32 s54, s54, {L_W}")
    a("v_lshrrev_b32 v4, 2, v0\nv_lshlrev_b32 v5, 7, v4\nv_bfe_u32 v4, v0, 3, 2\nv_lshl_add_u32 v5, v4, 5, v5")
    a("v_and_b32 v6, 3, v0\nv_lshl_add_u32 v5, v6, 3, v5\nv_add_u32 v12, s54, v5")
    for u in range(1, 4): a(f"v_xor_b32 v{12+u}, {32*u}, v12")
    a(f"s_lshr_b32 s64, s58, 1\ns_lshl_b32 s64, s64, 17\ns_lshl_b32 s59, s29, 14\ns_add_u32 s64, s64, s59\ns_and_b32 s59, s58, 1\ns_lshl2_add_u32 s59, s59, s57\ns_lshl_b32 s59, s59, 7\ns_add_u32 s64, s64, s59\ns_add_u32 s64, s64, {hex(WS_SH+0x1000)}")
    a("v_bfe_u32 v4, v0, 3, 1\nv_lshlrev_b32 v16, 8, v4\nv_and_b32 v4, 7, v0\nv_lshl_add_u32 v16, v4, 4, v16\nv_lshl_add_u32 v16, v2, 13, v16")
    a(f"v_and_b32 v4, 1, v0\nv_mul_u32_u24 v21, 272, v4\nv_lshrrev_b32 v4, 1, v3\nv_lshl_add_u32 v21, v4, 5, v21\nv_lshrrev_b32 v4, 3, v3\nv_add_u32 v4, v4, v2\nv_lshl_add_u32 v21, v4, 3, v21\nv_add_u32 v21, {L_YA}, v21")
    OJP, OJ2, OG, OS = {0: (11, 10, 8, 4), 2: (11, 4, 9, 5), 3: (5, 4, 10, 6)}[o["oc"]]
    a(f"v_min_u32 v4, 13, v3\nv_lshlrev_b32 v17, {OS}, v4\nv_lshl_add_u32 v17, v2, {OG}, v17")
    a(f"s_lshl_b32 s66, s29, 14\ns_lshl_b32 s53, s57, 17\ns_add_u32 s66, s66, s53\ns_lshr_b32 s53, s51, 1\ns_lshl_b32 s53, s53, 13\ns_add_u32 s66, s66, s53\ns_and_b32 s53, s51, 1\ns_lshl_b32 s53, s53, {OJP}\ns_add_u32 s66, s66, s53\ns_add_u32 s66, s66, {hex(WS_SH)}\ns_lshl_b32 s53, s50, 18\ns_add_u32 s66, s66, s53")
    a(f"s_lshr_b32 s53, s51, 1\ns_lshl1_add_u32 s53, s50, s53\ns_lshl_b32 s53, s53, 6\ns_add_u32 s53, s53, {L_WT}\nv_lshl_add_u32 v18, v2, 4, s53")
    a(f"s_lshl_b32 s53, s51, 10\ns_mul_i32 s59, s50, 272\ns_add_u32 s53, s53, s59\ns_add_u32 s53, s53, {L_YA}\nv_lshl_add_u32 v20, v0, 2, s53\nv_lshrrev_b32 v4, 5, v0\nv_lshl_add_u32 v20, v4, 3, v20")
    WA, WL, WB, WC = 24, 40, 48, 80
    def a_loads(b):
        for j2 in range(2):
            d = WA + 8*b + 4*j2
            a(f"buffer_load_dwordx4 v[{d}:{d+3}], v17, s[36:39], s{66+b} offen offset:{j2 << OJ2} sc1")
    a(f"v_mov_b32 v7, {L_FL+4*F_WO}\nv_mov_b32 v6, {L_FL+4*F_LAM}\ns_mov_b32 s53, {L_FL+4*F_OK}\nv_writelane_b32 v7, s53, 1")
    def b_reads(j2):
        for u in range(4):
            for hf in range(2):
                d = WB + 16*j2 + 4*u + 2*hf
                a(f"ds_read_b64_tr_b16 v[{d}:{d+1}], v{12+u} offset:{4096*j2 + 2048*hf}")
    if o.get("a_gate") is not None: a(f"s_mov_b32 s53, {L_FL+4*(F_O+o['a_gate'])}\nv_writelane_b32 v7, s53, 2")
    fresh("w")
    wait_flag("v7", "s3", slp=1)
    if o["a_early"]: a_loads(0)
    b_reads(0)
    a(f"v_mov_b32 v7, {L_FL+4*F_WO2}")
    wait_flag("v7", "s3", slp=0)
    tl(4)
    if not o["a_early"]: a_loads(0)
    b_reads(1)
    if o["wdual"]:
        a("s_mov_b32 s3, 0\ns_mov_b64 s[72:73], -1")
        a.label("L_wa")
        spin_guard("s3", "L_wa_x")
        a("s_or_b64 exec, s[72:73], 1")
        a_loads(0)
        a("s_mov_b64 exec, -1")
        a(f"ds_read_b32 v23, v6\nds_read_b128 v[{WL}:{WL+3}], v18")
        a("s_waitcnt vmcnt(2) lgkmcnt(0)")
    else:
        a("s_mov_b32 s3, 0\ns_branch L_wa_c")
        a.label("L_wa")
        spin_guard("s3", "L_wa_x")
        a("s_mov_b64 exec, s[72:73]\ns_cbranch_execz L_wa1")
        a_loads(0)
        a.label("L_wa1")
        a("s_mov_b64 exec, -1")
        a.label("L_wa_c")
        a(f"ds_read_b32 v23, v6\nds_read_b128 v[{WL}:{WL+3}], v18")
        a("s_waitcnt vmcnt(0) lgkmcnt(0)")
    a(f"v_max3_u32 v22, v{WA}, v{WA+1}, v{WA+2}\nv_max3_u32 v19, v{WA+3}, v{WA+4}, v{WA+5}\nv_cmp_eq_u32 vcc, 0, v23\nv_max3_u32 v22, v22, v{WA+6}, v{WA+7}\nv_max_u32 v22, v22, v19")
    a("v_cmp_eq_u32 s[72:73], -1, v22\ns_or_b64 s[76:77], s[72:73], vcc\ns_cbranch_scc1 L_wa")
    a.label("L_wa_x")
    tl(5)
    def post(u):
        c = WC + 4*u
        return [f"v_mul_f32 v{c}, v{c}, v{WL}", f"v_fmac_f32 v{c}, v{c+1}, v{WL+1}", f"v_fmac_f32 v{c}, v{c+2}, v{WL+2}", f"v_fmac_f32 v{c}, v{c+3}, v{WL+3}"]
    for u in range(4):
        for j2 in range(2):
            mfma(WC+4*u, WA+4*j2, WB+16*j2+4*u, None if j2 == 0 else WC+4*u)
            if u == 3:
                for op in post(0)[2*j2:2*j2+2]: a(op)
    for op in post(1): a(op)
    p2, p3 = post(2), post(3)
    a(p2[0]); a(p2[1]); a(f"{SW16} v{WC}, v{WC+4}"); a(p2[2]); a(p2[3]); a(f"v_add_f32 v{WC}, v{WC}, v{WC+4}")
    for op in p3: a(op)
    a(f"{SW16} v{WC+8}, v{WC+12}\nv_add_f32 v{WC+8}, v{WC+8}, v{WC+12}\n{SW32} v{WC}, v{WC+8}\nv_add_f32 v{WC}, v{WC}, v{WC+8}\nds_write_b32 v20, v{WC}")
    tl(2)
    a("s_cmp_lg_u32 s28, 0")
    a("s_waitcnt lgkmcnt(0)\ns_barrier")
    a("s_cbranch_scc1 L_gend")
    a("ds_read2st64_b64 v[32:35], v21 offset0:0 offset1:2\nds_read2st64_b64 v[36:39], v21 offset0:4 offset1:6")
    a("s_waitcnt lgkmcnt(1)\nv_pk_add_f32 v[32:33], v[32:33], v[34:35]\ns_waitcnt lgkmcnt(0)\nv_pk_add_f32 v[36:37], v[36:37], v[38:39]")
    a("v_pk_add_f32 v[32:33], v[32:33], v[36:37]\nv_cvt_pk_bf16_f32 v32, v32, v33")
    regroup(32)
    a(f"s_mov_b64 exec, 0xffffffff\nbuffer_store_dwordx4 v[32:35], v16, s[36:39], s64 offen sc1")
    tl(6)
    end_wave(True)
    a.label("L_gend")
    end_wave()

    a.label("L_att")
    a("s_cmp_eq_u32 s28, 5\ns_cbranch_scc1 L_w5")
    a("s_sub_u32 s52, s28, 6\ns_lshl_b32 s55, s52, 13\ns_add_u32 s53, s34, s55\ns_add_u32 s54, s53, 4096"); wrap("s53"); wrap("s54")
    a("s_add_u32 s33, s69, 17\ns_lshr_b32 s33, s33, 1\ns_sub_u32 s74, s33, 1")
    a("s_cmp_ge_u32 s52, s33\ns_cbranch_scc1 L_exit2")
    a("v_lshlrev_b32 v8, 4, v0\nv_lshlrev_b32 v124, 4, v0\nv_bfe_u32 v10, v0, 2, 2")
    a(f"s_lshl_b32 s68, s52, 8\ns_add_u32 s68, s68, {L_P}\nv_lshlrev_b32 v9, 5, v2\nv_lshl_add_u32 v9, v10, 3, v9\nv_add_u32 v9, s68, v9")
    a("s_mov_b32 s56, 0x11111111\ns_mov_b32 s57, 0x11111111\ns_lshl_b64 s[58:59], s[56:57], 1\ns_lshl_b64 s[60:61], s[56:57], 2\ns_lshl_b64 s[62:63], s[56:57], 3")
    a("s_mov_b32 s66, 0x05040100\ns_mov_b32 s67, 0x07060302")
    a(f"v_lshlrev_b32 v15, 4, v10\nv_add_u32 v15, {L_LA}, v15")
    a(f"v_bfe_u32 v4, v0, 2, 1\nv_lshlrev_b32 v7, 13, v4\nv_bfe_u32 v4, v0, 3, 1\nv_lshl_add_u32 v7, v4, 17, v7\nv_bfe_u32 v4, v0, 1, 1\nv_lshl_add_u32 v7, v4, {OJP}, v7\nv_and_b32 v4, 1, v0\nv_lshl_add_u32 v7, v4, {OJ2}, v7\nv_lshl_add_u32 v7, v2, {OG}, v7")
    a(f"s_lshl_b32 s70, s29, 14\ns_lshl_b32 s71, s31, 18\ns_add_u32 s70, s70, s71\ns_lshl_b32 s71, s32, {OS}\ns_add_u32 s70, s70, s71\ns_add_u32 s70, s70, {hex(WS_SH)}")
    a("s_waitcnt lgkmcnt(0)")
    ws_srd(); srd(44, 8, 0x8000000); srd(48, 8, 0x8000000)
    a("s_cmp_eq_u32 s52, s74\ns_cselect_b32 s68, s69, 0\ns_bitcmp1_b32 s68, 0\ns_cselect_b32 s50, 0, s50")
    if o["par"]:
        a("s_cmp_lt_u32 s52, 8\ns_cbranch_scc1 L_atn\ns_cmp_lg_u32 s69, 4\ns_cbranch_scc1 L_atn")
        a("s_sub_u32 s68, 9, s52\ns_lshl_b32 s53, s68, 8\ns_add_u32 s53, s53, s34\ns_add_u32 s53, s53, 0x10000\ns_add_u32 s54, s53, 4096")
        a("v_lshrrev_b32 v4, 1, v2\nv_and_b32 v5, 1, v2\nv_lshlrev_b32 v124, 4, v3\nv_lshl_add_u32 v124, v4, 13, v124\nv_lshl_add_u32 v124, v5, 9, v124")
        a(f"s_lshl_b32 s68, s68, 5\ns_add_u32 s68, s68, {L_P+2048}\nv_lshlrev_b32 v9, 3, v10\nv_lshl_add_u32 v9, v4, 8, v9\nv_lshl_add_u32 v9, v5, 6, v9\nv_add_u32 v9, s68, v9")
        a.label("L_atn")
    a(f"s_sub_u32 s68, s30, 12\ns_cmp_ge_u32 s68, 16\ns_cselect_b32 s72, {o['nch10']}, {o['nch9']}")
    if o["nchb"]: a(f"s_cmp_eq_u32 s29, 0\ns_cselect_b32 s68, {o['nchb']}, 0\ns_add_u32 s72, s72, s68")
    a("s_sub_u32 s68, 5, s72\ns_min_i32 s69, s68, 1\ns_cmp_lt_u32 s52, s72\ns_cselect_b32 s68, s69, s68\ns_sub_u32 s69, s33, %d\ns_min_u32 s69, s69, s52\ns_add_u32 s68, s68, s69\ns_max_i32 s68, s68, 1" % o["casc"])
    a(f"v_mov_b32 v13, {L_FL+4*F_TK}\nv_mov_b32 v11, s68\nv_mov_b32 v12, 1")
    wait_flag("v13", "s3", thr="v11")
    tl(1)
    VV, VA, VB, VO, VSUM = 32, 16, 64, 96, 116
    for t in range(8):
        a(f"buffer_load_dwordx4 v[{VV+4*t}:{VV+4*t+3}], v124, {'s[44:47], s53' if t < 4 else 's[48:51], s54'} offen offset:{1024*(t&3)} nt")
    def perms(m, with_mfma=False):
        for d in range(4):
            s1 = f"v{VV+4*(2*m)+d}"; s0 = f"v{VV+4*(2*m+1)+d}"
            a(f"v_perm_b32 v{VB+4*(2*d)+m}, {s0}, {s1}, s66\nv_perm_b32 v{VB+4*(2*d+1)+m}, {s0}, {s1}, s67")
            if with_mfma and d >= 1:
                for e in (2*d-2, 2*d-1): mfma(VO+4*(e>>2), VB+4*e, VA+4*(e&3), VO+4*(e>>2))
    a(f"s_add_u32 s68, s52, {o['wo_back']}")
    if o["wo_b3"]: a(f"s_cmp_eq_u32 s32, 7\ns_cselect_b32 s69, {o['wo_b3']}, 0\ns_add_u32 s68, s68, s69")
    if o.get("wo_at") is not None: a(f"s_add_u32 s68, s52, s74\ns_sub_u32 s68, s68, {o['wo_at']}")
    a(f"s_cmp_lg_u32 s68, s74\ns_cbranch_scc1 L_att0\ns_waitcnt vmcnt({o['handw']})\nds_write_b32 v13, v12 offset:{4*(F_WS-F_TK)}")
    a.label("L_att0")
    a(f"s_add_u32 s69, s52, s72\ns_cmp_ge_u32 s69, s33\ns_cbranch_scc1 L_att1")
    a(f"s_waitcnt vmcnt({HAND})\ns_mov_b64 exec, 1\nds_add_u32 v13, v12\ns_mov_b64 exec, -1")
    a.label("L_att1")
    tl(2)
    a(f"s_mov_b32 s73, {L_FL+4*F_OK}\ns_sub_u32 s75, s33, 3")
    a(f"s_lshl_b32 s68, s52, 2\ns_add_u32 s68, s68, {L_FL+4*F_O-4}\nv_mov_b32 v13, s68\ns_lshl_b32 s68, s52, 11\nv_add_u32 v5, s68, v8\nv_add_u32 v6, -2048, v5")
    a(f"v_min_u32 v11, s75, v0\nv_lshlrev_b32 v11, 2, v11\nv_add_u32 v11, {L_FL+4*F_O}, v11\nv_writelane_b32 v11, s73, 63")
    fresh("u")
    if o["pearly"]:
        a("ds_read_b128 v[112:115], v15\ns_mov_b32 s77, 0\ns_waitcnt lgkmcnt(0)\nv_max3_u32 v4, v112, v113, v114\nv_max_u32 v4, v4, v115\nv_cmp_eq_u32 vcc, -1, v4\ns_cbranch_vccz L_att3")
        a("s_mov_b32 s77, 1\ns_waitcnt vmcnt(6)"); perms(0)
        a("s_waitcnt vmcnt(4)"); perms(1)
        a("s_waitcnt vmcnt(2)"); perms(2)
    wait4("v15", 112, "s3", slp=1)
    a.label("L_att3")
    tl(3)
    a("ds_read_b64 v[104:105], v9\nds_read_b64 v[106:107], v9 offset:128")
    a("v_pk_add_f32 v[112:113], v[112:113], v[114:115]\nv_add_f32 v112, v112, v113\nv_rcp_f32 v112, v112")
    for k in range(8): a(f"v_mov_b32 v{VO+k}, 0")
    a("s_waitcnt lgkmcnt(0)\nv_mov_b32 v113, v112")
    for u in range(4):
        for k in range(4): a(f"v_cndmask_b32 v{VA+4*u+k}, 0, v{104+k}, s[{56+2*u}:{57+2*u}]")
    a("s_cmp_lg_u32 s52, s74\ns_cbranch_scc1 L_att2")
    wait_flag("v11", "s3", slp=0)
    a("v_readlane_b32 s73, v4, 63")
    T = (104, VSUM)
    def rd(u, dst): a(f"ds_read_b128 v[{dst}:{dst+3}], v8 offset:{2048*u}\nds_read_b128 v[{dst+4}:{dst+7}], v8 offset:{2048*u+1024}")
    def acc(src):
        for k in range(0, 8, 2): a(f"v_pk_add_f32 v[{VO+k}:{VO+k+1}], v[{VO+k}:{VO+k+1}], v[{src+k}:{src+k+1}]")
    rd(0, VO); rd(1, T[1]); rd(2, T[0])
    for u in range(1, 8):
        if u >= 6: a(f"s_cmp_lt_u32 s33, {u+3}\ns_cbranch_scc1 L_att2")
        a(f"s_waitcnt lgkmcnt({2 if u < 7 else 0})")
        acc(T[u & 1])
        if u + 2 < 8: rd(u + 2, T[u & 1])
    a.label("L_att2")
    fresh("v")
    if o["pearly"]: a("s_cmp_eq_u32 s77, 1\ns_cbranch_scc1 L_att4")
    a("s_waitcnt vmcnt(6)"); perms(0)
    a("s_waitcnt vmcnt(4)"); perms(1)
    a("s_waitcnt vmcnt(2)"); perms(2)
    a.label("L_att4")
    a("s_mov_b32 s3, 0\ns_cmp_lg_u32 s52, s74\ns_waitcnt vmcnt(0)"); tl(4)
    a(f"s_cbranch_scc1 L_att5\nds_read_b32 v115, v13\nds_read_b128 v[{VSUM}:{VSUM+3}], v6\nds_read_b128 v[{VSUM+4}:{VSUM+7}], v6 offset:1024")
    a.label("L_att5")
    perms(3, True)
    for e in (6, 7): mfma(VO+4, VB+4*e, VA+4*(e&3), VO+4)
    a("s_cbranch_scc0 L_att_c")
    a(f"ds_write_b128 v5, v[{VO}:{VO+3}]\nds_write_b128 v5, v[{VO+4}:{VO+7}] offset:1024\nds_write_b32 v13, v12 offset:4")
    tl(5)
    a("s_sub_u32 s68, s30, 12\ns_cmp_ge_u32 s68, 16\ns_cbranch_scc1 L_exit2\ns_lshr_b32 s68, s28, 2\ns_cmp_eq_u32 s68, 2\ns_cbranch_scc1 L_wo")
    end_wave()
    a.label("L_att_l")
    a(f"ds_read_b32 v115, v13\nds_read_b128 v[{VSUM}:{VSUM+3}], v6\nds_read_b128 v[{VSUM+4}:{VSUM+7}], v6 offset:1024")
    spin_guard("s3", "L_att_a", 8)
    a.label("L_att_c")
    a("s_waitcnt lgkmcnt(2)\nv_cmp_eq_u32 vcc, 0, v115\ns_cbranch_vccnz L_att_l")
    a.label("L_att_a")
    a("s_waitcnt lgkmcnt(0)\ns_nop 0")
    acc(VSUM)
    a.label("L_att_p")
    for k in range(0, 8, 2): a(f"v_pk_mul_f32 v[{VO+k}:{VO+k+1}], v[{VO+k}:{VO+k+1}], v[112:113]")
    a("s_cmp_eq_u32 s73, 1")
    for r in range(4): a(f"v_cvt_pk_bf16_f32 v{16+r}, v{VO+r}, v{VO+4+r}")
    a("s_cbranch_scc0 L_att_g")
    a("buffer_store_dwordx4 v[16:19], v7, s[36:39], s70 offen\ns_branch L_att_h")
    a.label("L_att_g")
    a("buffer_store_dwordx4 v[16:19], v7, s[36:39], s70 offen sc1")
    a.label("L_att_h")
    tl(6)
    a("ds_write_b32 v13, v12 offset:4")
    if TS: a("s_cmp_lt_u32 s30, 12\ns_cbranch_scc1 L_tsdump")
    end_wave()

    a.label("L_w5")
    walk("A")
    a("s_setprio 3")
    a("s_waitcnt lgkmcnt(0)\nv_mov_b32 v57, 1")
    if o["tlb"]:
        srd(44, 8, 0x8000000); srd(48, 12, 4096*1024)
        a("v_mov_b32 v20, 0\ns_lshl_b32 s52, s29, 19\ns_mov_b64 exec, 1\nbuffer_load_dword v21, v20, s[44:47], s34 offen nt\nbuffer_load_dword v22, v20, s[48:51], s52 offen nt\ns_mov_b64 exec, -1")
    X5 = "L_hp" if o["hp"] is not None else "L_exit2"
    a(f"s_cmp_lt_u32 s30, 12\ns_cbranch_scc1 {X5}\ns_cmp_ge_u32 s30, 28\ns_cbranch_scc1 {X5}")
    a("s_sub_u32 s58, s32, 4\ns_mov_b32 s57, s31")
    row8_voff("v5", None)
    a("v_and_b32 v6, 3, v4\nv_lshl_add_u32 v8, v6, 12, v5\nv_lshrrev_b32 v6, 2, v4\nv_lshl_add_u32 v8, v6, 15, v8")
    a(f"v_add_u32 v9, {64*1024-1024}, v8\nv_add_u32 v10, {16*1024-2048}, v8\nv_add_u32 v11, {80*1024-3072}, v8")
    srd(44, 12, 4096*1024)
    a("s_lshl_b32 s52, s29, 19\ns_lshl_b32 s53, s57, 18\ns_add_u32 s52, s52, s53\ns_lshl_b32 s53, s58, 7\ns_add_u32 s52, s52, s53")
    a(f"s_mov_b32 m0, {L_W}\nv_mov_b32 v6, {L_FL+4*F_WS}")
    if not o.get("wo_first"): wait_flag("v6", "s3")
    tl(4)
    for n in range(8):
        j2, wv = n >> 2, n & 3
        if n > 0: a(f"s_mov_b32 m0, {L_W + wv*8192 + j2*4096}\ns_add_u32 s53, s52, {((wv>>1)*128 + 2*(wv&1) + j2)*1024}")
        for t in range(4):
            if o.get("wo_cap") and 4*n+t >= o["wo_cap"]: a(f"s_waitcnt vmcnt({o['wo_cap']-1})")
            a(f"buffer_load_dwordx4 v{8+t}, s[44:47], {'s53' if n else 's52'} offen offset:{1024*t} nt lds")
    a(f"v_mov_b32 v56, {L_FL+4*F_WO}\ns_waitcnt vmcnt({o['wo_h']})\nds_write_b32 v56, v57\ns_waitcnt vmcnt(0)\nds_write_b32 v56, v57 offset:{4*(F_WO2-F_WO)}")
    tl(5)
    end_wave()

    if o["hp"] is not None:
        a.label("L_hp")
        a("s_and_b32 s57, s30, 3\ns_lshl3_add_u32 s58, s57, s29")
        fmap4("s59", "s58", "s57")
        a("s_cmp_ge_u32 s59, 28\ns_cbranch_scc1 L_exit2")
        a("s_lshr_b32 s53, s30, 2\ns_min_u32 s53, s53, 3\ns_sub_u32 s53, s53, 1")
        a("s_mul_i32 s54, s53, 20480\ns_lshl_b32 s52, s59, 16\ns_add_u32 s52, s52, s54\ns_add_u32 s54, s52, 0x2000\ns_add_u32 s55, s52, 0x4000\nv_lshlrev_b32 v8, 7, v0")
        srd(44, 20, 1792*1024)
        if o.get("hp_gu"):
            srd(40, 16, 512*3584); srd(48, 18, 512*3584)
            a("v_and_b32 v9, 31, v0\nv_lshrrev_b32 v10, 5, v0\nv_lshl_add_u32 v9, v10, 6, v9\nv_add_u32 v9, 32, v9\nv_mul_u32_u24 v9, 3584, v9")
            a(f"s_mul_i32 s56, s53, {128*3584}\ns_lshl_b32 s57, s59, 7\ns_add_u32 s56, s56, s57\ns_add_u32 s57, s57, {384*3584}")
        a(f"v_mov_b32 v6, {L_FL+4*(F_O+o['hp'])}")
        wait_flag("v6", "s3", slp=2)
        M = o.get("hp_m", " nt")
        for off in ((0, 64) if o.get("hp_2") else (0,)):
            if o.get("hp_gu"): a(f"buffer_load_dword v23, v9, s[48:51], s56 offen offset:{off}{M}\nbuffer_load_dword v24, v9, s[48:51], s57 offen offset:{off}{M}")
            if o.get("hp_gu") == 2: a(f"buffer_load_dword v23, v9, s[40:43], s56 offen offset:{off}{M}\nbuffer_load_dword v24, v9, s[40:43], s57 offen offset:{off}{M}")
            a(f"buffer_load_dword v20, v8, s[44:47], s52 offen offset:{off}{M}\nbuffer_load_dword v21, v8, s[44:47], s54 offen offset:{off}{M}\nbuffer_load_dword v22, v8, s[44:47], s55 offen offset:{off}{M}")
        a("s_waitcnt vmcnt(0)")
        tl(5)
        end_wave()
    if o["chf"]: a.lines.append(".p2align 10")
    if o["fj"] == 2:
        a.label("L_ffn8")
        a("v_mov_b32 v12, -1\nv_mov_b32 v13, -1\nv_mov_b32 v14, -1\nv_mov_b32 v15, -1\nv_lshlrev_b32 v10, 4, v0\ns_waitcnt lgkmcnt(0)")
        ws_srd()
    a.label("L_ffn")
    if o["fj"]: a("s_barrier")
    a("s_cmp_ge_u32 s28, 8\ns_cbranch_scc1 L_ffn4")
    a(f"s_mov_b64 exec, 1\nv_mov_b32 v4, {L_FL+4*F_CL}\nv_mov_b32 v5, 1\ns_waitcnt vmcnt(0)\nds_add_u32 v4, v5\ns_mov_b64 exec, -1")
    tl(6)
    a.label("L_ffn4")
    a("s_xor_b32 s28, s28, 8")
    if o["fmap"] == 5:
        a("s_add_u32 s31, s29, 7\ns_and_b32 s31, s31, 7\ns_lshl2_add_u32 s31, s31, s30")
    elif o["fmap"] == 4:
        fmap4("s31", "s2", "s30")
    elif o["fmap"] == 3:
        a("s_add_u32 s31, s29, s30\ns_and_b32 s31, s31, 3\ns_lshl_b32 s3, s30, 2\ns_add_u32 s31, s31, s3\ns_add_u32 s31, s31, 12")
        a("s_lshl_b32 s3, s29, 2\ns_add_u32 s52, s3, 3\ns_cmp_eq_u32 s30, 0\ns_cselect_b32 s31, s52, s31")
        a("s_add_u32 s3, s3, s30\ns_sub_u32 s3, s3, 16\ns_cmp_ge_u32 s29, 4\ns_cselect_b32 s31, s3, s31")
        a("s_cmp_ge_u32 s2, 28\ns_cselect_b32 s31, s2, s31")
    elif o["fmap"] == 0: a("s_add_u32 s31, s29, s30\ns_and_b32 s31, s31, 7\ns_lshl_b32 s3, s30, 3\ns_add_u32 s31, s31, s3")
    elif o["fmap"] == 1: a("s_add_u32 s31, s30, 1\ns_and_b32 s31, s31, 3\ns_add_u32 s31, s31, s29\ns_and_b32 s31, s31, 7\ns_lshl_b32 s3, s30, 3\ns_add_u32 s31, s31, s3")
    else:
        a("s_lshl_b32 s31, s29, 2\ns_mul_i32 s3, s29, 3\ns_add_u32 s3, s3, 4\ns_min_u32 s31, s31, s3\ns_add_u32 s31, s31, s30")
        a("s_cmp_ge_u32 s2, 28\ns_cselect_b32 s31, s2, s31")
    a("s_cmp_ge_u32 s31, 28\ns_cbranch_scc1 L_idle")
    a("s_cmp_ge_u32 s28, 8\ns_cbranch_scc1 L_fd")
    a.label("L_p1")
    row8_voff("v5", None)
    a("v_and_b32 v6, 1, v4\nv_lshrrev_b32 v4, 1, v4\nv_lshl_add_u32 v4, v4, 3, v6")
    a(f"v_mul_u32_u24 v4, 3584, v4\nv_add_u32 v116, v4, v5")
    for t in range(1, 4): a(f"v_add_u32 v{116+t}, {(4*(t&1) + 2*(t>>1))*3584 - 1024*t}, v116")
    a("v_and_b32 v4, 1, v0\nv_lshlrev_b32 v11, 10, v4\nv_bfe_u32 v4, v0, 1, 2\nv_lshl_add_u32 v11, v4, 4, v11\nv_lshrrev_b32 v4, 1, v2\nv_lshl_add_u32 v11, v4, 6, v11\nv_and_b32 v4, 1, v2\nv_lshl_add_u32 v11, v4, 3, v11")
    a("s_lshl_b32 s62, s28, 7")
    a("s_mul_i32 s52, s28, 64*3584\ns_lshl_b32 s53, s31, 7\ns_add_u32 s52, s52, s53\ns_lshl_b32 s54, s28, 13")
    srd(40, 4, 2048); srd(44, 16, 512*3584); srd(48, 18, 512*3584)
    a("buffer_load_dwordx2 v[124:125], v11, s[40:43], s62 offen")
    a("v_lshrrev_b32 v4, 2, v0\nv_lshlrev_b32 v5, 7, v4\nv_bfe_u32 v4, v0, 3, 2\nv_lshl_add_u32 v5, v4, 5, v5")
    a("v_and_b32 v6, 3, v0\nv_lshl_add_u32 v5, v6, 3, v5\nv_add_u32 v12, s54, v5")
    for u in range(1, 4): a(f"v_xor_b32 v{12+u}, {32*u}, v12")
    if o["bt"] == 1: a("s_barrier")
    if o["bt"] == 2:
        a(f"v_mov_b32 v6, {L_FL+4*F_CL}\nv_mov_b32 v7, 7")
        wait_flag("v6", "s3", thr="v7", slp=2)
    for u in range(4): a(f"v_add_u32 v{4+u}, 0x10000, v{12+u}")
    tl(4)
    FB, FC = 24, 88
    def fb_reads(k):
        ks, mat = k >> 1, k & 1
        for u in range(4):
            for hf in range(2):
                d = FB + 32*mat + 8*u + 4*ks + 2*hf
                a(f"ds_read_b64_tr_b16 v[{d}:{d+1}], v{(4 if mat else 12)+u} offset:{4096*ks + 2048*hf}")
    n = 0; done = 0; landed = -1
    for hh in range(2):
        for mat in range(2):
            a(f"s_add_u32 m0, s54, {0x10000*mat + 0x1000*hh}")
            if hh == 1 and mat == 0: a(f"s_add_u32 s52, s52, {32*3584}")
            for t in range(4):
                FC_ = FCAP if n < o["fsw"] else o["fcap2"]
                if o.get("fcl"): FC_ = int(o["fcl"][n])
                if n >= FC_: a(f"s_waitcnt vmcnt({FC_-1})")
                landed = max(landed, n - FC_)
                a(f"buffer_load_dwordx4 v{116+t}, s[{44+4*mat}:{47+4*mat}], s52 offen offset:{1024*t} nt lds")
                if landed >= 4*done + 3: fb_reads(done); done += 1
                if n + 1 == o["is_n"]: a(f"s_mov_b64 exec, 1\nv_mov_b32 v8, {L_FL+4*F_IS}\nv_mov_b32 v9, 1\nds_add_u32 v8, v9\ns_mov_b64 exec, -1")
                n += 1
    fresh("m")
    while done < 4:
        a(f"s_waitcnt vmcnt({12-4*done})")
        if done == 3:
            tl(1)
            a(f"s_load_dword s55, s[26:27], {hex(WS_DIE)}\ns_load_dwordx2 s[60:61], s[26:27], 0")
        fb_reads(done); done += 1
    a("s_mov_b32 s72, 0x00ff00ff\ns_mov_b32 s73, 0x00ff00ff\nv_cndmask_b32 v124, 0, v124, s[72:73]\nv_cndmask_b32 v125, 0, v125, s[72:73]")
    AV, YR, SEL, C0, C1, YD, G1 = 88, 104, 4, 12, 120, 16, 20
    a("v_and_b32 v1, 2, v0\nv_mul_u32_u24 v1, 0x5555, v1\nv_add_u32 v1, 0x4444, v1\nv_lshrrev_b32 v16, 2, v3")
    for k in range(4): a(f"v_mov_b32 v{G1+k}, 0x3f803f80\nv_mov_b32 v{C1+k}, 0")
    for t in range(4):
        a(f"v_cmp_eq_u32 vcc, {t}, v16")
        for k in range(4): a(f"v_cndmask_b32 v{AV+4*t+k}, 0, v{G1}, vcc")
    a("s_waitcnt lgkmcnt(0)")
    for k in range(4): a(f"v_mov_b32 v{C0+k}, 0")
    for t in range(4): smf(C0, AV+4*t, FB+8*t, "v1"); smf(C1, AV+4*t, FB+32+8*t, "v1")
    a(f"s_lshl_b32 s53, s28, 9\ns_add_u32 s53, s53, {L_CS}\nv_lshl_add_u32 v18, v0, 3, s53")
    a(f"v_add_f32 v16, v{C0}, v{C0+2}\nv_add_f32 v17, v{C1}, v{C1+2}\nds_write_b64 v18, v[16:17]")
    for k in range(4): a(f"v_mov_b32 v{C0+k}, 0\nv_mov_b32 v{C1+k}, 0")
    a(f"s_mov_b64 exec, 1\nds_add_u32 v8, v9 offset:{4*(F_CS-F_IS)}\ns_mov_b64 exec, -1")
    tag_from(60)
    go_word("s3", "v8", "v9")
    near_copy("s53", "s55")
    a(f"s_lshr_b32 s52, s28, 1\ns_lshl_b32 s52, s52, 17\ns_add_u32 s52, s52, s53\ns_and_b32 s53, s28, 1\ns_lshl_b32 s53, s53, 9\ns_add_u32 s52, s52, s53\ns_add_u32 s52, s52, {hex(WS_SH+0x1000)}\ns_mov_b32 s3, 0")
    a("v_lshrrev_b32 v10, 3, v0\nv_lshlrev_b32 v10, 14, v10\nv_and_b32 v8, 7, v0\nv_lshl_add_u32 v10, v8, 4, v10")
    fresh("p")
    a("v_and_b32 v8, 1, v0\nv_lshlrev_b32 v8, 4, v8\nv_mov_b32 v9, 0x3f80\nv_lshlrev_b32 v8, v8, v9")
    a("v_lshrrev_b32 v9, 2, v3\nv_and_b32 v16, 2, v2\nv_xor_b32 v9, v9, v16")
    for k in range(2): a(f"v_cmp_eq_u32 vcc, {k}, v9\nv_cndmask_b32 v{SEL+k}, 0, v8, vcc\nv_cndmask_b32 v{SEL+2+k}, 0, v8, vcc")
    a(f"s_lshl_b32 s53, s28, 10\ns_add_u32 s53, s53, {L_FP}\nv_lshl_add_u32 v2, v0, 4, s53")
    a(f"s_mul_i32 s53, s28, 80\ns_add_u32 s53, s53, {L_FP+0x2000}\nv_lshl_add_u32 v3, v0, 4, s53")
    a(f"s_add_u32 s77, s62, {L_HL}\nv_add_u32 v11, s77, v11")
    tl(2)
    def y_loads():
        for n in range(4): a(f"buffer_load_dwordx4 v[{YR+4*n}:{YR+4*n+3}], v10, s[36:39], s52 offen offset:{256*(n&1) + 128*(n>>1)} sc1")
    YP = 4 if o["ydual"] else 0
    if YP: y_loads(); a(f"s_sleep {o['ydual']}")
    a("s_mov_b64 s[74:75], -1")
    a.label("L_h2")
    spin_guard("s3", "L_h2x")
    if o["ysl"]: a(f"s_sleep {o['ysl']}")
    if o["ynar"]: a("s_cmp_eq_u64 s[74:75], 0\ns_cselect_b64 exec, -1, s[74:75]")
    y_loads()
    a("s_mov_b64 exec, -1")
    unpack(f"v{YD}", f"v{YD+1}", "v124"); unpack(f"v{YD+2}", f"v{YD+3}", "v125")
    a(f"s_waitcnt vmcnt({YP+2})"); smf(YD, SEL, YR, "v1")
    a(f"s_waitcnt vmcnt({YP})"); smf(YD, SEL, YR+8, "v1")
    if o["ynar"]: a(f"v_max3_u32 v8, v{YR}, v{YR+4}, v{YR+8}\nv_max_u32 v8, v8, v{YR+12}\nv_cmp_eq_u32 s[74:75], -1, v8")
    for k in range(4): a(f"v_add_f32_dpp v{YD+k}, v{YD+k}, v{YD+k} row_ror:8 {FULL}")
    a(f"v_cvt_pk_bf16_f32 v8, v{YD}, v{YD+1}\nv_cvt_pk_bf16_f32 v9, v{YD+2}, v{YD+3}")
    if o["ynar"]: a(f"v_cmp_u_f32 vcc, v{YD}, v{YD+2}\ns_cbranch_vccnz L_h2")
    else: a(f"v_cmp_u_f32 vcc, v{YD}, v{YD+2}\ns_and_b64 exec, exec, vcc\ns_cbranch_scc1 L_h2")
    a.label("L_h2x")
    a("s_mov_b64 exec, -1")
    tl(3)
    def hmov(dst, t, d): a(f"v_mov_b32_dpp v{dst+d}, v{8+(d&1)} {ror4(t-(d>>1))} row_mask:0xf bank_mask:{hex(1<<t)}")
    for d in range(4): hmov(AV, 0, d)
    hmov(AV+4, 1, 0); hmov(AV+4, 1, 1)
    smf(C0, AV, FB, "v1"); hmov(AV+4, 1, 2); hmov(AV+4, 1, 3)
    smf(C1, AV, FB+32, "v1"); hmov(G1, 0, 0); hmov(G1, 0, 1)
    smf(C0, AV+4, FB+8, "v1"); hmov(G1, 0, 2); hmov(G1, 0, 3)
    smf(C1, AV+4, FB+40, "v1"); hmov(AV+8, 2, 0); hmov(AV+8, 2, 1)
    mfma(YD, AV, G1); hmov(AV+8, 2, 2); hmov(AV+8, 2, 3); hmov(AV+12, 3, 0); hmov(AV+12, 3, 1)
    smf(C0, AV+8, FB+16, "v1"); hmov(AV+12, 3, 2); hmov(AV+12, 3, 3)
    smf(C1, AV+8, FB+48, "v1")
    a("ds_write_b64 v11, v[8:9]")
    smf(C0, AV+12, FB+24, "v1")
    smf(C1, AV+12, FB+56, "v1")
    a(f"s_mov_b64 exec, 31\nds_write_b128 v3, v[{YD}:{YD+3}]\ns_mov_b64 exec, -1")
    a(f"v_pk_add_f32 v[4:5], v[{C0}:{C0+1}], v[{C0+2}:{C0+3}]\nv_pk_add_f32 v[6:7], v[{C1}:{C1+1}], v[{C1+2}:{C1+3}]\nds_write_b128 v2, v[4:7]")
    a("s_waitcnt lgkmcnt(0)\ns_barrier")
    if TS: a("s_sleep 30")
    end_wave()
    a.label("L_fd")
    a("s_and_b32 s62, s28, 3\ns_lshl_b32 s54, s62, 10")
    a("s_cmp_lt_u32 s28, 12\ns_cbranch_scc1 L_fd1\ns_cmp_lg_u32 s28, 15\ns_cbranch_scc1 L_tretF")
    walk("F")
    a("s_cmp_lg_u32 s31, 0\ns_cbranch_scc1 L_exit2")
    a(f"s_add_u32 s76, s54, {hex(WS_PD+(24 if o['fmap'] >= 4 else 28)*16384)}\ns_add_u32 s77, s76, 0x2000")
    a(f"s_lshl_b32 s53, s62, 8\ns_add_u32 s53, s53, {L_HL}\nv_lshl_add_u32 v22, v3, 4, s53\nv_lshl_add_u32 v22, v2, 1, v22")
    if o["bt"] == 1: a("s_barrier")
    a("s_barrier")
    for r in range(4): a(f"ds_read_u16 v{16+r}, v22 offset:{1024*(r&1) + 8*(r>>1)}")
    a("s_waitcnt lgkmcnt(0)")
    for r in range(4): a(f"v_lshlrev_b32 v{16+r}, 16, v{16+r}")
    a("buffer_store_dwordx4 v[16:19], v10, s[36:39], s76 offen sc1\nbuffer_store_dwordx4 v[16:19], v10, s[36:39], s77 offen sc1")
    end_wave()
    fresh("e", jump=False)
    a.label("L_fd1")
    a("s_lshl_b32 s52, s31, 16\ns_lshl_b32 s53, s62, 8\ns_add_u32 s52, s52, s53\ns_add_u32 s53, s52, 0x1000\ns_add_u32 s54, s52, 0x8000\ns_add_u32 s55, s52, 0x9000")
    a("v_lshlrev_b32 v5, 13, v2\nv_lshl_add_u32 v5, v3, 4, v5\nv_mov_b32 v22, v10")
    srd(40, 20, 1792*1024)
    DV, DB = 24, 56
    a("s_mov_b32 s66, 0x05040100\ns_mov_b32 s67, 0x07060302")
    a(f"v_lshlrev_b32 v14, 3, v0\nv_add_u32 v14, {L_CS}, v14\nv_add_u32 v23, {L_FP}, v10")
    a(f"v_bfe_u32 v13, v0, 3, 1\nv_and_b32 v12, 7, v0\nv_mul_u32_u24 v21, 80, v12\nv_add_u32 v21, {L_FP+0x2000}, v21\nv_mul_u32_u24 v12, 20, v13\nv_add_u32 v20, v21, v12\nv_lshl_add_u32 v21, v13, 2, v21")
    a("v_and_b32 v1, 2, v0\nv_mul_u32_u24 v1, 0x5555, v1\nv_add_u32 v1, 0x4444, v1\nv_mov_b32 v2, 0")
    a("s_mov_b32 s56, 0xfff0fff0\ns_mov_b32 s57, s56\ns_mov_b32 s58, 0xff0fff0f\ns_mov_b32 s59, s58\ns_mov_b32 s60, 0xf0fff0ff\ns_mov_b32 s61, s60\ns_mov_b32 s62, 0x0fff0fff\ns_mov_b32 s63, s62")
    a(f"v_mov_b32 v6, {L_FL+4*F_IS}\nv_mov_b32 v7, {o['d_is']}")
    if o["bt"] == 1: a("s_barrier")
    if o["d_is"]: wait_flag("v6", "s3", thr="v7", slp=2)
    def d_load(n): a(f"buffer_load_dwordx4 v[{DV+4*(n&7)}:{DV+4*(n&7)+3}], v5, s[40:43], s{52+(n>>2)} offen offset:{1024*(n&3)} nt")
    for n in range(8): d_load(n)
    for ks in range(2):
        for m in range(4):
            a(f"s_waitcnt vmcnt({6 if ks == 0 else 6-2*m})")
            for d in range(4):
                s1 = f"v{DV+4*(2*m)+d}"; s0 = f"v{DV+4*(2*m+1)+d}"
                a(f"v_perm_b32 v{DB+4*ks+8*(2*d)+m}, {s0}, {s1}, s66\nv_perm_b32 v{DB+4*ks+8*(2*d+1)+m}, {s0}, {s1}, s67")
            if ks == 0: d_load(8+2*m); d_load(9+2*m)
    tl(1)
    fresh("d")
    a(f"v_mov_b32 v6, {L_FL+4*F_CS}\nv_mov_b32 v7, 8")
    wait_flag("v6", "s3", thr="v7", slp=1)
    for k in range(4): a(f"ds_read2st64_b64 v[{24+4*k}:{27+4*k}], v14 offset0:{2*k} offset1:{2*k+1}")
    for k in range(8): a(f"v_mov_b32 v{4+k}, 0")
    a("s_mov_b32 vcc_lo, 0x55555555\ns_mov_b32 vcc_hi, 0x55555555")
    a("s_waitcnt lgkmcnt(0)")
    for k in range(1, 8): a(f"v_pk_add_f32 v[24:25], v[24:25], v[{24+2*k}:{25+2*k}]")
    a("v_mul_f32 v124, 0xbb000000, v24\nv_mul_f32 v14, 0xbb000000, v25\nv_mov_b32 v13, 0x3727c5ac\nv_mov_b32 v125, v124\nv_mov_b32 v15, v14")
    tl(2)
    a("s_barrier")
    tl(4)
    a("ds_read2_b32 v[18:19], v20 offset0:0 offset1:10\nds_read2_b32 v[16:17], v21 offset0:16 offset1:18")
    for k in range(8): a(f"ds_read_b128 v[{24+4*k}:{27+4*k}], v23 offset:{1024*k}")
    def pa(d, x): a(f"v_pk_add_f32 v[{d}:{d+1}], v[{d}:{d+1}], v[{x}:{x+1}]\nv_pk_add_f32 v[{d+2}:{d+3}], v[{d+2}:{d+3}], v[{x+2}:{x+3}]")
    def p1(d, x): a(f"v_pk_add_f32 v[{d}:{d+1}], v[{d}:{d+1}], v[{x}:{x+1}]")
    D3 = ("quad_perm:[1,0,3,2]", "quad_perm:[2,3,0,1]", "row_half_mirror")
    a("s_waitcnt lgkmcnt(8)\nv_add_f32 v16, v16, v17\nv_add_f32 v12, v18, v19\ns_waitcnt lgkmcnt(6)"); p1(24, 28)
    a(f"v_add_f32_dpp v16, v16, v16 {D3[0]} {FULL}\nv_add_f32_dpp v12, v12, v12 {D3[0]} {FULL}"); p1(26, 30)
    a(f"v_add_f32_dpp v16, v16, v16 {D3[1]} {FULL}\nv_add_f32_dpp v12, v12, v12 {D3[1]} {FULL}\ns_waitcnt lgkmcnt(4)"); p1(32, 36)
    a(f"v_add_f32_dpp v16, v16, v16 {D3[2]} {FULL}\nv_add_f32_dpp v12, v12, v12 {D3[2]} {FULL}"); p1(34, 38)
    a(f"v_mov_b32_dpp v122, v16 row_newbcast:0 {FULL}\nv_mov_b32_dpp v123, v16 row_newbcast:8 {FULL}\ns_waitcnt lgkmcnt(2)")
    pa(40, 44); pa(24, 32)
    a("v_mul_f32 v3, 0x3b000000, v16\ns_waitcnt lgkmcnt(0)")
    pa(48, 52)
    a("v_pk_fma_f32 v[24:25], v[122:123], v[124:125], v[24:25]\nv_pk_fma_f32 v[26:27], v[122:123], v[14:15], v[26:27]")
    pa(40, 48); pa(24, 40)
    a("v_pk_mul_f32 v[16:17], v[24:25], v[26:27]\nv_fmac_f32 v13, 0x3b000000, v12\nv_fma_f32 v13, -v3, v3, v13")
    if o.get("dprof"): tl(2)
    a(f"v_cndmask_b32_dpp v18, v17, v16, vcc quad_perm:[0,0,2,2] {FULL}\ns_not_b64 vcc, vcc\nv_cndmask_b32_dpp v19, v16, v17, vcc quad_perm:[1,1,3,3] {FULL}\ns_mov_b64 vcc, s[56:57]\nv_cvt_pk_bf16_f32 v16, v18, v19\nv_max_f32 v13, 0x3727c5ac, v13\nv_rcp_f32 v13, v13")
    def amov(t, d): a(f"v_cndmask_b32_dpp v{40+4*t+d}, v16, v2, vcc {ror4(t-d)} {FULL}")
    for d in range(4): amov(0, d)
    if o.get("dprof"): tl(3)
    a("s_mov_b64 vcc, s[58:59]"); amov(1, 0); amov(1, 1)
    for t in range(4):
        smf(4, 40+4*t, DB+8*t, "v1")
        if t < 3: amov(t+1, 2); amov(t+1, 3)
        if t < 2: a(f"s_mov_b64 vcc, s[{60+2*t}:{61+2*t}]")
        smf(8, 40+4*t, DB+32+8*t, "v1")
        if t < 2: amov(t+2, 0); amov(t+2, 1)
        if t == 2: a(f"v_mov_b32_dpp v120, v13 row_newbcast:0 {FULL}\nv_mov_b32_dpp v121, v13 row_newbcast:8 {FULL}")
    a("v_pk_add_f32 v[16:17], v[4:5], v[6:7]\nv_pk_add_f32 v[18:19], v[8:9], v[10:11]\nv_pk_mul_f32 v[16:17], v[16:17], v[120:121]\nv_pk_mul_f32 v[18:19], v[18:19], v[120:121]")
    if o.get("dprof"): tl(6)
    a("buffer_store_dwordx4 v[16:19], v22, s[36:39], s76 offen sc1\nbuffer_store_dwordx4 v[16:19], v22, s[36:39], s77 offen sc1")
    tl(5)
    if TS: a("s_cmp_eq_u32 s28, 11\ns_cbranch_scc1 L_tsdump")
    end_wave()

    a.label("L_idle")
    if TS: a("s_cmp_lg_u32 s31, 30\ns_cselect_b32 s3, s28, 0\ns_cmp_eq_u32 s3, 12\ns_cbranch_scc1 L_tsdump")
    a("s_cmp_lg_u32 s31, 30\ns_cbranch_scc1 L_exit2")
    a("s_cmp_lg_u32 s28, 3\ns_cbranch_scc1 L_exit2")
    if o["pbar"]: a("s_barrier")
    a(f"s_load_dwordx2 s[60:61], s[26:27], 0\ns_mov_b32 s52, {hex(WS_PB)}\ns_mov_b32 s53, {hex(WS_PB+0x2000)}\ns_mov_b64 exec, 0xff\ns_mov_b32 s54, -1\ns_mov_b32 s55, -1")
    a("buffer_store_dwordx4 v[12:15], v10, s[36:39], s52 offen sc1\nbuffer_store_dwordx4 v[12:15], v10, s[36:39], s53 offen sc1\ns_waitcnt vmcnt(0)")
    a("s_memtime s[64:65]\ns_waitcnt lgkmcnt(0)")
    for r in range(o["nprobe"]):
        for k in range(2):
            a(f"buffer_store_dwordx4 v[12:15], v10, s[36:39], s{52+k} offen sc1\ns_waitcnt vmcnt(0)\ns_memtime s[66:67]\ns_waitcnt lgkmcnt(0)")
            a(f"s_sub_u32 s68, s66, s64\ns_min_u32 s{54+k}, s{54+k}, s68\ns_mov_b32 s64, s66")
    tag_from(60)
    a("s_mov_b64 exec, -1")
    check_all("s3", "L_pb1", "v5", 24)
    a.label("L_pb1")
    a(f"s_mov_b64 exec, 0xff\ns_getreg_b32 s56, hwreg(HW_REG_XCC_ID, 2, 1)\ns_cmp_gt_u32 s54, s55\ns_addc_u32 s60, s60, s56\nv_mov_b32 v12, s60\ns_movk_i32 s52, {hex(WS_DIE)}")
    a("buffer_store_dwordx4 v[12:15], v10, s[36:39], s52 offen sc1")
    if TS: a("s_add_u32 s90, s100, s54\ns_add_u32 s92, s100, s55")
    end_wave(True)

    if TS:
        for lbl in ("L_tsend", "L_tsdump"):
            a.label(lbl)
            if lbl == "L_tsend": a.label("L_exit2")
            a(f"s_mov_b64 exec, -1\ns_waitcnt lgkmcnt(0)\nv_mov_b32 {VTS}, 0\nv_writelane_b32 {VTS}, s100, 0")
            ts(63)
            for k in range(1, 7): a(f"v_writelane_b32 {VTS}, s{86+2*k}, {k}")
            a(f"s_waitcnt vmcnt(0)\ns_lshl_b32 s98, s28, 8\ns_add_u32 s98, s98, {L_TS}\nv_lshl_add_u32 v126, v0, 2, s98\nds_write_b32 v126, {VTS}\ns_waitcnt lgkmcnt(0)")
            if lbl == "L_tsend": a("s_endpgm")
        a("s_sleep 127\ns_sleep 127\ns_sleep 127")
        ws_srd()
        a(f"s_lshl_b32 s98, s2, 12\ns_add_u32 s98, s98, {hex(WS_TS)}\nv_lshlrev_b32 v126, 4, v0\nv_add_u32 v125, {L_TS}, v126")
        for k in range(4):
            a(f"ds_read_b128 v[4:7], v125 offset:{1024*k}\ns_waitcnt lgkmcnt(0)\nbuffer_store_dwordx4 v[4:7], v126, s[36:39], s98 offen offset:{1024*k}\ns_waitcnt vmcnt(0)")
    else:
        if o.get("enc"):
            wg, wv, k, M, C = o["enc"]
            a.label("L_enc")
            if o.get("agg"):
                g0, g1, w0, w1 = o["agg"]
                srd(40, 24, 256)
                a("s_mov_b64 exec, 1\nv_mov_b32 v4, 0\ns_waitcnt lgkmcnt(0)\nv_mov_b32 v5, s96")
                a(f"s_cmp_lt_u32 s2, {g0}\ns_cbranch_scc1 L_ag\ns_cmp_ge_u32 s2, {g1}\ns_cbranch_scc1 L_ag\ns_cmp_lt_u32 s28, {w0}\ns_cbranch_scc1 L_ag\ns_cmp_ge_u32 s28, {w1}\ns_cbranch_scc1 L_ag")
                a("buffer_atomic_umax v5, v4, s[40:43], 0 offen sc1")
                a.label("L_ag")
            a(f"s_cmp_lg_u32 s2, {wg}\ns_cbranch_scc1 L_exit\ns_cmp_lg_u32 s28, {wv}\ns_cbranch_scc1 L_exit\ns_waitcnt lgkmcnt(0)")
            if o.get("agg"): a("s_sleep 127\nbuffer_load_dword v5, v4, s[40:43], 0 offen sc1\ns_waitcnt vmcnt(0)\nv_readfirstlane_b32 s96, v5")
            if o.get("skw") == "xcc": a("s_getreg_b32 s96, hwreg(HW_REG_XCC_ID, 0, 4)\ns_mul_i32 s96, s96, 100\ns_add_u32 s96, s96, s100")
            elif o.get("skw") is not None:
                for x in range(8): a(f"s_load_dword s{64+x}, s[26:27], {0x3000+128*x}")
                a("s_waitcnt lgkmcnt(0)")
                for x in range(8): a(f"s_sub_u32 s{64+x}, s{64+x}, s100")
                if o["skw"] == "max":
                    a("s_mov_b32 s72, s64")
                    for x in range(1, 8): a(f"s_max_i32 s64, s64, s{64+x}\ns_min_i32 s72, s72, s{64+x}")
                    a("s_sub_u32 s96, s64, s72\ns_add_u32 s96, s96, s100")
                else: a(f"s_add_u32 s96, s{64+o['skw']}, s100")
            a(f"s_sub_u32 s94, s96, s100\ns_mul_i32 s94, s94, {M}\ns_add_u32 s94, s94, {C}\ns_min_u32 s94, s94, 20000\ns_add_u32 s94, s94, s100")
            a.label("L_enc1")
            a("s_sleep 2\ns_memrealtime s[96:97]\ns_waitcnt lgkmcnt(0)\ns_sub_u32 s95, s94, s96\ns_cmp_gt_i32 s95, 0\ns_cbranch_scc1 L_enc1")
        a.label("L_exit2")
    a.label("L_exit")
    a("s_endpgm")
    a(f""".section .rodata,"a"
.p2align 6
.amdhsa_kernel {KN}
  .amdhsa_next_free_vgpr 128
  .amdhsa_next_free_sgpr 102
  .amdhsa_accum_offset 128
  .amdhsa_group_segment_fixed_size 0
  .amdhsa_kernarg_size 96
  .amdhsa_user_sgpr_count 2
  .amdhsa_user_sgpr_kernarg_segment_ptr 1
  .amdhsa_system_sgpr_workgroup_id_x 1
  .amdhsa_float_denorm_mode_32 3
.end_amdhsa_kernel""")
    open(path, "w").write(a.finalize())

if __name__ == "__main__":
    import json
    if len(sys.argv) > 1:
        variants = json.loads(open(sys.argv[1]).read())
        for nm, op in variants.items(): gen(f"{nm}_ts.s", TS=True, opts=op)
    else:
        gen("k35.s"); gen("k35_ts.s", TS=True); gen("k35g_ts.s", TS=True, opts=dict(force_global=1))
```
